```python
import torch

def _softmax(x, axis=-1):
    return torch.softmax(x, dim=axis)
def _gelu(x):
    return torch.nn.functional.gelu(x, approximate="tanh")
def _silu(x):
    return torch.nn.functional.silu(x)
def _sigmoid(x):
    return torch.sigmoid(x)
def _layernorm(x, axis=-1, eps=1e-5):
    m = x.mean(dim=axis, keepdim=True)
    v = x.var(dim=axis, keepdim=True, unbiased=False)
    return (x - m) / torch.sqrt(v + eps)
def _scatter_add(tgt, idx, src, axis=0):
    return tgt.clone().index_add_(axis, idx, src)
def _segment_sum(src, seg, n):
    out = torch.zeros((n,) + src.shape[1:], dtype=src.dtype)
    return out.index_add_(0, seg, src)
def _pad(x, pw):
    flat = tuple(v for pair in reversed(pw) for v in pair)
    return torch.nn.functional.pad(x, flat)

kernel_name = 'interleave_layers__mha_block__dense_activation_relu__prompt'

def setup_inputs():

    _w = (lambda a: (lambda t: t.to(torch.bfloat16) if t.is_floating_point() else t)(torch.as_tensor(a)))
    def _A_setup():
        B, S, D, H = 1, 2048, 448, 16
        return {
            "x": _w((lambda *s: torch.randn(*s, dtype=torch.bfloat16) * 0.05)(B, S, D)),
            "wqkv": _w((lambda *s: torch.randn(*s, dtype=torch.bfloat16) * 0.05)(D, 3 * D)),
            "wo": _w((lambda *s: torch.randn(*s, dtype=torch.bfloat16) * 0.05)(D, D)),
        }
    _A_in = _A_setup()

    def _B_setup():
        B, S, D, Dff = 1, 2048, 448, 1792
        return {
            "x": _w((lambda *s: torch.randn(*s, dtype=torch.bfloat16) * 0.05)(B, S, D)),
            "w1": _w((lambda *s: torch.randn(*s, dtype=torch.bfloat16) * 0.05)(D, Dff)),
            "w2": _w((lambda *s: torch.randn(*s, dtype=torch.bfloat16) * 0.05)(Dff, D)),
        }
    _B_in = _B_setup()

    return {
        "A_x": _A_in["x"],
        "A_wqkv": _A_in["wqkv"],
        "A_wo": _A_in["wo"],
        "B_x": _B_in["x"],
        "B_w1": _B_in["w1"],
        "B_w2": _B_in["w2"],
    }

def reference(A_x, A_wqkv, A_wo, B_x, B_w1, B_w2):
    def _A_ref(x, wqkv, wo):
        B, S, D = x.shape
        H = 16
        Dh = D // H
        qkv = (lambda x, *d: x.permute(*d))((x @ wqkv).reshape(B, S, 3, H, Dh), 2, 0, 3, 1, 4)
        q, k, v = qkv[0], qkv[1], qkv[2]
        scores = torch.einsum("bhqd,bhkd->bhqk", q, k) * (Dh ** -0.5)
        p = _softmax(scores, axis=-1)
        o = torch.einsum("bhqk,bhkd->bhqd", p, v)
        return (lambda x, *d: x.permute(*d))(o, 0, 2, 1, 3).reshape(B, S, D) @ wo

    def _B_ref(x, w1, w2):
        h = torch.einsum("bsd,df->bsf", x, w1)
        zero = torch.zeros_like(h)
        h = torch.maximum(h, zero)
        return torch.einsum("bsf,fd->bsd", h, w2)

    x = A_x
    x = x + _A_ref(_layernorm(x, axis=-1), A_wqkv, A_wo)
    x = x + _B_ref(_layernorm(x, axis=-1), B_w1, B_w2)
    x = x + _A_ref(_layernorm(x, axis=-1), A_wqkv, A_wo)
    x = x + _B_ref(_layernorm(x, axis=-1), B_w1, B_w2)
    return x
```

```python
import re

class Kern:
    def __init__(self, name):
        self.name = name
        self.lines = []
    def __call__(self, s):
        for l in s.split("\n"):
            l = l.strip()
            if l:
                self.lines.append(l)
    def label(self, l):
        self.lines.append(l + ":")
    def nop(self, n):
        while n > 0:
            k = min(n, 16)
            self.lines.append("s_nop %d" % (k - 1))
            n -= k
    def text(self):
        out = []
        for l in self.lines:
            if l.endswith(":") or l.startswith("."):
                out.append(l)
            else:
                out.append("    " + l)
        return "\n".join(out)

def vr(b, n=1, p="v"):
    return "%s%d" % (p, b) if n == 1 else "%s[%d:%d]" % (p, b, b + n - 1)
def ar(b, n=1):
    return vr(b, n, "a")
def sr(b, n=1):
    return vr(b, n, "s")

_reg_re = re.compile(r"^(-|\|)?(?:abs\()?([vas])(?:(\d+)|\[(\d+):(\d+)\])\)?\|?$")
def regs_of(tok):
    tok = tok.strip()
    m = _reg_re.match(tok)
    if m:
        p = m.group(2)
        if m.group(3) is not None:
            return {(p, int(m.group(3)))}
        return {(p, i) for i in range(int(m.group(4)), int(m.group(5)) + 1)}
    if tok == "vcc":
        return {("s", "vcc")}
    if tok == "exec":
        return {("s", "exec")}
    if tok == "m0":
        return {("s", "m0")}
    return set()

TRANS = ("v_exp_f32", "v_log_f32", "v_rcp_f32", "v_rsq_f32", "v_sqrt_f32", "v_sin_f32", "v_cos_f32")

def split_ops(rest):
    parts = [p.strip() for p in rest.split(",")]
    out = []
    depth = 0
    cur = ""
    for ch in rest:
        if ch == "[": depth += 1
        if ch == "]": depth -= 1
        if ch == "," and depth == 0:
            out.append(cur.strip()); cur = ""
        else:
            cur += ch
    out.append(cur.strip())
    res = []
    for o in out:
        res.append(o.split()[0] if o else o)
    return res

class Ins:
    pass

def parse(line):
    line = line.split(";")[0].strip()
    if not line or line.endswith(":") or line.startswith("."):
        return None
    sp = line.split(None, 1)
    op = sp[0]
    rest = sp[1] if len(sp) > 1 else ""
    ops = split_ops(rest) if rest else []
    i = Ins()
    i.line = line; i.op = op
    i.w = set(); i.r = set(); i.kind = "other"; i.states = 1
    i.srcC = set(); i.srcAB = set(); i.data = set(); i.wide = False
    base = op.replace("_e32", "").replace("_e64", "")
    if op == "s_nop":
        i.states = int(ops[0], 0) + 1
        i.kind = "salu"
    elif op.startswith("v_mfma"):
        i.kind = "mfma"
        i.w = regs_of(ops[0]); i.srcAB = regs_of(ops[1]) | regs_of(ops[2]); i.srcC = regs_of(ops[3])
        i.r = i.srcAB | i.srcC
        i.passes = 8 if "32x32x" in op else 4
    elif op.startswith("v_"):
        i.kind = "valu"
        i.trans = base in TRANS
        i.dot = base.startswith("v_dot")
        if base.startswith("v_cmp"):
            i.w = regs_of(ops[0])
            for o in ops[1:]: i.r |= regs_of(o)
        elif base.startswith("v_permlane32_swap") or base.startswith("v_permlane16_swap"):
            i.w = regs_of(ops[0]) | regs_of(ops[1]); i.r = set(i.w); i.permlane = True
        elif base in ("v_add_co_u32", "v_addc_co_u32", "v_sub_co_u32"):
            i.w = regs_of(ops[0]) | regs_of(ops[1])
            for o in ops[2:]: i.r |= regs_of(o)
        else:
            i.w = regs_of(ops[0])
            for o in ops[1:]: i.r |= regs_of(o)
            if base in ("v_fmac_f32", "v_dot2c_f32_bf16", "v_pk_fmac_f16") or "UNUSED_PRESERVE" in line:
                i.r |= regs_of(ops[0])
            if base == "v_cndmask_b32" and len(ops) == 3:
                i.r |= {("s", "vcc")}
    elif op.startswith("buffer_") or op.startswith("global_"):
        i.kind = "vmem"
        lds = " lds" in (" " + rest + " ") or "_lds_" in op
        i.lds = lds
        if op in ("buffer_wbl2", "buffer_inv"):
            pass
        elif "load" in op and not lds:
            i.w = regs_of(ops[0])
            for o in ops[1:]: i.r |= regs_of(o)
        elif "load" in op:
            for o in ops: i.r |= regs_of(o)
            i.r |= {("s", "m0")}
        elif "store" in op:
            for o in ops: i.r |= regs_of(o)
            d = ops[0] if op.startswith("buffer_") else ops[1]
            i.data = regs_of(d)
            i.wide = ("x3" in op or "x4" in op)
        else:
            for o in ops: i.r |= regs_of(o)
            if "sc0" in rest:
                i.w = regs_of(ops[0])
    elif op.startswith("ds_"):
        i.kind = "ds"
        if "read" in op or "permute" in op or "swizzle" in op:
            i.w = regs_of(ops[0])
            for o in ops[1:]: i.r |= regs_of(o)
        else:
            for o in ops: i.r |= regs_of(o)
    elif op.startswith("s_"):
        i.kind = "salu"
        if op.startswith(("s_cmp", "s_cbranch", "s_branch", "s_waitcnt", "s_barrier", "s_endpgm", "s_setprio", "s_sleep", "s_bitcmp")):
            for o in ops: i.r |= regs_of(o)
        else:
            if ops: i.w = regs_of(ops[0])
            for o in ops[1:]: i.r |= regs_of(o)
            if "saveexec" in op:
                i.w |= {("s", "exec")}
    return i

def is_vec(r): return r[0] in ("v", "a")

def need(prod, cons):
    n = 0
    pk, ck = prod.kind, cons.kind
    if pk == "valu":
        vw = {r for r in prod.w if is_vec(r)}
        sw = {r for r in prod.w if not is_vec(r)}
        if ck == "mfma" and vw & cons.r: n = max(n, 2)
        if ck == "valu":
            if getattr(cons, "permlane", False) and vw & cons.r: n = max(n, 2)
            if "dpp" in cons.op and vw & cons.r: n = max(n, 2)
            if cons.op.startswith(("v_readfirstlane", "v_readlane")) and vw & cons.r: n = max(n, 1)
            if prod.trans and not cons.trans and vw & cons.r: n = max(n, 1)
            if sw & cons.r: n = max(n, 2)
            if prod.dot and (vw & (cons.r | cons.w)) and not (cons.op == prod.op): n = max(n, 3)
            if ("sdwa" in prod.op or "op_sel:" in prod.line) and vw & (cons.r): n = max(n, 1)
            if ("s", "exec") in sw and getattr(cons, "permlane", False): n = max(n, 4)
        if prod.trans and ck in ("vmem", "ds", "mfma") and vw & cons.r: n = max(n, 1)
        if prod.dot and ck in ("vmem", "ds", "mfma") and vw & cons.r: n = max(n, 3)
        if ck == "vmem" and sw & cons.r: n = max(n, 5)
        if ck == "mfma" and ("s", "exec") in sw: n = max(n, 4)
    if pk == "mfma":
        p = prod.passes
        t_rw = {4: 8, 8: 12}[p]
        t_ov = {4: 6, 8: 10}[p]
        t_war = {4: 3, 8: 7}[p]
        if ck == "mfma":
            if prod.w & cons.srcAB: n = max(n, t_rw)
            if prod.w & cons.srcC and not (prod.w == cons.srcC and prod.op == cons.op): n = max(n, t_ov)
            if prod.w & cons.w and not (prod.w == cons.w): n = max(n, t_ov)
        if ck in ("valu", "vmem", "ds"):
            if prod.w & (cons.r | cons.w): n = max(n, t_rw)
        if ck == "valu" and prod.srcC & cons.w: n = max(n, t_war)
    if pk == "vmem" and prod.wide:
        if ck == "valu" and prod.data & cons.w: n = max(n, 2)
        elif ck in ("vmem", "ds", "mfma") and prod.data & cons.w: n = max(n, 1)
    if pk == "salu" and ("s", "m0") in prod.w:
        if ck == "vmem" and getattr(cons, "lds", False): n = max(n, 1)
    return n

def check_seq(seq, name):
    errs = []
    for j, c in enumerate(seq):
        dist = 0
        for k in range(j - 1, max(-1, j - 24), -1):
            p = seq[k]
            nd = need(p, c)
            if nd > dist:
                errs.append("%s: need %d have %d: [%s] -> [%s]" % (name, nd, dist, p.line, c.line))
            dist += p.states
            if dist >= 20: break
    return errs

def check_kernel(k):
    ins = []; labels = {}
    for l in k.lines:
        if l.endswith(":"):
            labels[l[:-1]] = len(ins)
            continue
        i = parse(l)
        if i is not None: ins.append(i)
    errs = []
    seg = []
    for i in ins:
        seg.append(i)
        if i.op in ("s_branch", "s_endpgm"):
            errs += check_seq(seg, k.name); seg = []
    errs += check_seq(seg, k.name)
    for idx, i in enumerate(ins):
        if i.op.startswith(("s_cbranch", "s_branch")):
            tgt = i.line.split()[1]
            if tgt in labels:
                t = labels[tgt]
                seq = ins[max(0, idx - 24): idx + 1] + ins[t: t + 24]
                e = check_seq(seq, k.name + "(edge %s)" % tgt)
                errs += e
    return sorted(set(errs))
```

```python
import sys, math
from asmlib import *

NAME = "interleave_layers__mha_block__dense_activation_relu__prompt"

WQKV_F = 0x000000
W1_F   = 0x200000
W2_F   = 0x400000
WO_F   = 0x600000
XA     = 0x800000
XB     = 0xA00000
STA    = 0xC00000
STB    = 0xC80000
QF     = 0x1000000
KV     = 0x1200000
OF     = 0x1600000
HF     = 0x1800000
WS_USED = 0x2000000

QSCALE = (28 ** -0.5) * math.log2(math.e)
import struct
def f2u(x): return struct.unpack("<I", struct.pack("<f", x))[0]

kernels = []

def prologue(k, nwg):
    k(f"""
    s_cmp_ge_u32 s2, {nwg}
    s_cbranch_scc1 {k.name}_end
    s_load_dwordx2 s[4:5], s[0:1], 64
    v_lshrrev_b32 v3, 6, v0
    v_and_b32 v1, 63, v0
    s_mov_b32 s6, {WS_USED}
    v_readfirstlane_b32 s3, v3
    s_mov_b32 s7, 0x20000
    v_lshlrev_b32 v2, 4, v1
    """)

def end(k):
    k.label(f"{k.name}_end")
    k("s_endpgm")

def gen_prep():
    k = Kern("prep_kernel")
    prologue(k, 238)
    n = k.name
    k(f"""
    s_mov_b32 s11, 0x20000
    s_mov_b64 s[20:21], -1
    s_mov_b64 s[22:23], -1
    s_mov_b32 s18, 7
    s_mov_b32 s19, 0
    s_cmp_ge_u32 s2, 174
    s_cbranch_scc1 {n}_x
    s_cmp_ge_u32 s2, 160
    s_cbranch_scc1 {n}_wo
    s_cmp_ge_u32 s2, 104
    s_cbranch_scc1 {n}_w2
    s_cmp_ge_u32 s2, 48
    s_cbranch_scc1 {n}_w1
    """)
    k(f"""
    s_load_dwordx2 s[8:9], s[0:1], 8
    s_mov_b32 s10, {448*1344*2}
    s_lshr_b32 s24, s2, 4
    s_and_b32 s25, s2, 15
    s_mov_b32 s12, 2688
    s_mul_i32 s13, s24, 896
    s_mul_i32 s26, s25, 56
    s_add_u32 s13, s13, s26
    s_mul_i32 s26, s3, {112*2688}
    s_add_u32 s13, s13, s26
    s_mov_b32 s14, {16*2688}
    s_mov_b32 s15, {16*2688}
    s_mul_i32 s26, s25, {29*3072}
    s_lshl_b32 s27, s24, 10
    s_add_u32 s26, s26, s27
    s_add_u32 s19, s26, {WQKV_F + 28*3072}
    s_mul_i32 s27, s3, {7*3072}
    s_add_u32 s16, s26, s27
    s_add_u32 s16, s16, {WQKV_F}
    s_mov_b32 s17, 3072
    s_mov_b32 s20, 0x0fffffff
    s_mov_b32 s21, 0x0fffffff
    s_mov_b32 s22, 0x0fffffff
    s_mov_b32 s23, 0x0fffffff
    s_branch {n}_w
    """)
    k.label(f"{n}_w1")
    k(f"""
    s_load_dwordx2 s[8:9], s[0:1], 32
    s_mov_b32 s10, {448*1792*2}
    s_sub_u32 s24, s2, 48
    s_mov_b32 s12, 3584
    s_lshl_b32 s13, s24, 6
    s_mul_i32 s26, s3, {112*3584}
    s_add_u32 s13, s13, s26
    s_mov_b32 s14, {16*3584}
    s_mov_b32 s15, {16*3584}
    s_lshr_b32 s25, s24, 2
    s_and_b32 s27, s24, 3
    s_mul_i32 s26, s25, {29*4096}
    s_lshl_b32 s27, s27, 10
    s_add_u32 s26, s26, s27
    s_add_u32 s19, s26, {W1_F + 28*4096}
    s_mul_i32 s27, s3, {7*4096}
    s_add_u32 s16, s26, s27
    s_add_u32 s16, s16, {W1_F}
    s_mov_b32 s17, 4096
    s_branch {n}_w
    """)
    k.label(f"{n}_w2")
    k(f"""
    s_load_dwordx2 s[8:9], s[0:1], 40
    s_mov_b32 s10, {448*1792*2}
    s_sub_u32 s24, s2, 104
    s_lshr_b32 s25, s24, 2
    s_and_b32 s24, s24, 3
    s_mov_b32 s12, 896
    s_lshl_b32 s13, s25, 6
    s_mul_i32 s26, s24, {448*896}
    s_add_u32 s13, s13, s26
    s_mul_i32 s26, s3, {112*896}
    s_add_u32 s13, s13, s26
    s_mov_b32 s14, {16*896}
    s_mov_b32 s15, {16*896}
    s_lshr_b32 s26, s25, 1
    s_mul_i32 s26, s26, {112*2048}
    s_and_b32 s27, s25, 1
    s_lshl_b32 s27, s27, 10
    s_add_u32 s26, s26, s27
    s_mul_i32 s27, s24, {28*2048}
    s_add_u32 s26, s26, s27
    s_mul_i32 s27, s3, {7*2048}
    s_add_u32 s16, s26, s27
    s_add_u32 s16, s16, {W2_F}
    s_mov_b32 s17, 2048
    s_branch {n}_w
    """)
    k.label(f"{n}_wo")
    k(f"""
    s_load_dwordx2 s[8:9], s[0:1], 16
    s_mov_b32 s10, {448*448*2}
    s_sub_u32 s25, s2, 160
    s_mov_b32 s12, 896
    s_lshl_b32 s13, s25, 6
    s_mul_i32 s26, s3, {112*896}
    s_add_u32 s13, s13, s26
    s_mov_b32 s14, {16*896}
    s_mov_b32 s15, {12*896}
    s_lshr_b32 s26, s25, 1
    s_mul_i32 s26, s26, {32*2048}
    s_and_b32 s27, s25, 1
    s_lshl_b32 s27, s27, 10
    s_add_u32 s26, s26, s27
    s_lshl_b32 s27, s3, 14
    s_add_u32 s16, s26, s27
    s_add_u32 s16, s16, {WO_F}
    s_mov_b32 s17, 2048
    s_mov_b32 s18, 8
    s_mov_b32 s23, 0
    """)
    k.label(f"{n}_w")
    k(f"""
    v_lshrrev_b32 v4, 2, v1
    v_mul_lo_u32 v4, v4, s12
    v_and_b32 v6, 3, v1
    v_lshl_add_u32 v4, v6, 4, v4
    s_lshl_b32 s28, s3, 13
    v_lshrrev_b32 v5, 5, v1
    v_lshlrev_b32 v5, 8, v5
    v_bfe_u32 v7, v1, 2, 2
    v_lshl_add_u32 v5, v7, 6, v5
    v_bfe_u32 v7, v1, 4, 1
    v_lshl_add_u32 v5, v7, 5, v5
    v_lshl_add_u32 v5, v6, 3, v5
    v_add_u32 v5, s28, v5
    s_mov_b32 m0, s28
    s_waitcnt lgkmcnt(0)
    """)
    for b in range(8):
        if b == 7:
            k(f"s_cmp_eq_u32 s18, 7\ns_cbranch_scc1 {n}_w_l7")
        k(f"buffer_load_dwordx4 v4, s[8:11], s13 offen lds")
        if b < 7:
            k(f"""
            s_add_u32 s13, s13, {'s14' if b % 2 == 0 else 's15'}
            s_add_u32 s28, s28, 1024
            s_mov_b32 m0, s28
            s_nop 0
            """)
    k.label(f"{n}_w_l7")
    k("""
    v_mov_b32 v8, 0
    v_mov_b32 v9, 0x3f803f80
    s_waitcnt vmcnt(0)
    """)
    for b in range(8):
        k(f"ds_read_b64_tr_b16 {vr(16+4*b,2)}, v5 offset:{b*1024}")
        k(f"ds_read_b64_tr_b16 {vr(18+4*b,2)}, v5 offset:{b*1024+512}")
        if b == 6:
            k("s_waitcnt lgkmcnt(0)")
    k("s_waitcnt lgkmcnt(0)")
    for b in range(8):
        if b == 7:
            k(f"s_cmp_eq_u32 s18, 7\ns_cbranch_scc1 {n}_w_s7")
        for r in range(4):
            m = "s[22:23]" if (b % 2 == 1 and r >= 2) else "s[20:21]"
            k(f"v_cndmask_b32 v{16+4*b+r}, 0, v{16+4*b+r}, {m}")
        k(f"buffer_store_dwordx4 {vr(16+4*b,4)}, v2, s[4:7], s16 offen")
        k("s_add_u32 s16, s16, s17")
        for r in range(4):
            k(f"v_dot2c_f32_bf16 v8, v{16+4*b+r}, v9")
    k.label(f"{n}_w_s7")
    k(f"""
    s_cmp_eq_u32 s19, 0
    s_cbranch_scc1 {n}_end
    """)
    k(f"""
    s_nop 2
    v_mov_b32 v10, v8
    s_nop 1
    v_permlane32_swap_b32 v8, v10
    v_add_f32 v8, v8, v10
    s_lshl_b32 s28, s3, 8
    v_lshlrev_b32 v11, 2, v1
    v_add_u32 v12, s28, v11
    ds_write_b32 v12, v8 offset:32768
    s_waitcnt lgkmcnt(0)
    s_barrier
    s_cmp_lg_u32 s3, 0
    s_cbranch_scc1 {n}_end
    ds_read_b32 v12, v11 offset:{32768+256}
    ds_read_b32 v13, v11 offset:{32768+512}
    ds_read_b32 v14, v11 offset:{32768+768}
    s_waitcnt lgkmcnt(0)
    v_add_f32 v8, v8, v12
    v_add_f32 v13, v13, v14
    v_add_f32 v8, v8, v13
    v_cvt_pk_bf16_f32 v12, v8, v8
    v_and_b32 v13, 0xffff0000, v12
    v_sub_f32 v13, v8, v13
    v_cvt_pk_bf16_f32 v12, v8, v13
    s_mov_b32 s20, -1
    s_mov_b32 s21, 0
    v_cndmask_b32 v16, 0, v12, s[20:21]
    v_cndmask_b32 v17, 0, v12, s[20:21]
    v_mov_b32 v18, 0
    v_mov_b32 v19, 0
    buffer_store_dwordx4 v[16:19], v2, s[4:7], s19 offen
    s_endpgm
    """)
    k.label(f"{n}_x")
    k(f"""
    s_load_dwordx2 s[8:9], s[0:1], 0
    s_mov_b32 s10, {2048*448*2}
    s_sub_u32 s24, s2, 174
    s_mul_i32 s13, s24, {32*896}
    s_mul_i32 s26, s3, {7*32}
    s_add_u32 s13, s13, s26
    v_and_b32 v5, 31, v1
    v_lshrrev_b32 v6, 5, v1
    v_mul_u32_u24 v4, 896, v5
    v_lshl_add_u32 v4, v6, 4, v4
    s_mul_i32 s16, s24, {28*1024}
    s_mul_i32 s26, s3, {7*1024}
    s_add_u32 s16, s16, s26
    s_add_u32 s16, s16, {XA}
    s_waitcnt lgkmcnt(0)
    """)
    for b in range(7):
        k(f"buffer_load_dwordx4 {vr(16+4*b,4)}, v4, s[8:11], s13 offen offset:{b*32}")
    k(f"""
    v_mov_b32 v8, 0
    v_mov_b32 v10, 0
    v_mov_b32 v9, 0x3f803f80
    v_lshlrev_b32 v7, 7, v5
    v_lshl_add_u32 v7, v6, 6, v7
    s_lshl_b32 s26, s24, 12
    s_lshl_b32 s27, s3, 4
    s_add_u32 s26, s26, s27
    s_add_u32 s26, s26, {STA}
    """)
    for b in range(7):
        k(f"s_waitcnt vmcnt({6-b + b})" if False else f"s_waitcnt vmcnt({6})" if False else "")
        k(f"s_waitcnt vmcnt(6)")
        r = 16 + 4*b
        k(f"v_permlane32_swap_b32 v{r}, v{r+2}")
        k(f"v_permlane32_swap_b32 v{r+1}, v{r+3}")
        off = b * 1024
        if off < 4096:
            k(f"buffer_store_dwordx4 {vr(r,4)}, v2, s[4:7], s16 offen offset:{off}")
        else:
            if off == 4096: k("s_add_u32 s16, s16, 4096")
            k(f"buffer_store_dwordx4 {vr(r,4)}, v2, s[4:7], s16 offen offset:{off-4096}")
        for j in range(4):
            k(f"v_dot2c_f32_bf16 v8, v{r+j}, v9")
        for j in range(4):
            k(f"v_dot2c_f32_bf16 v10, v{r+j}, v{r+j}")
    k(f"""
    s_nop 2
    v_permlane32_swap_b32 v8, v10
    v_add_f32 v12, v8, v10
    v_mov_b32 v13, 0
    v_mov_b32 v14, 0
    v_mov_b32 v15, 0
    buffer_store_dwordx4 v[12:15], v7, s[4:7], s26 offen
    """)
    end(k)
    kernels.append((k, 48, 0, 32))

def stats_load(k, st_off_s, vbase, vaddr):
    k(f"""
    buffer_load_dwordx4 {vr(vbase,4)}, v{vaddr}, s[4:7], s{st_off_s} offen
    buffer_load_dwordx4 {vr(vbase+4,4)}, v{vaddr}, s[4:7], s{st_off_s} offen offset:16
    buffer_load_dwordx4 {vr(vbase+8,4)}, v{vaddr}, s[4:7], s{st_off_s} offen offset:32
    buffer_load_dwordx2 {vr(vbase+12,2)}, v{vaddr}, s[4:7], s{st_off_s} offen offset:48
    """)

def gen_gemmA(kind):
    NT = 3 if kind == "qkv" else 4
    nwg = 256 if kind == "qkv" else 224
    k = Kern(f"{kind}_kernel")
    n = k.name
    prologue(k, nwg)
    XIN, ST = (XA, STA) if kind == "qkv" else (XB, STB)
    WB = WQKV_F if kind == "qkv" else W1_F
    BLK = NT * 1024
    ACC = 16
    BB = 96
    BSZ = 4 * NT * 4
    STV = 80
    MUF = 8
    RSTD = 12
    if kind == "qkv":
        k("s_and_b32 s8, s2, 15\ns_lshr_b32 s9, s2, 4")
    else:
        k(f"""
        s_mul_hi_u32 s9, s2, {(2**32 + 13)//14}
        s_mul_i32 s8, s9, 14
        s_sub_u32 s8, s2, s8
        """)
    k(f"""
    s_lshl_b32 s10, s9, 2
    s_add_u32 s10, s10, s3
    s_mul_i32 s11, s10, {28*1024}
    s_add_u32 s11, s11, {XIN}
    s_mul_i32 s13, s3, {BLK}
    s_mul_i32 s12, s8, {29*BLK}
    s_add_u32 s12, s12, {WB}
    s_min_u32 s15, s3, {NT-1}
    s_lshl_b32 s15, s15, 10
    s_add_u32 s15, s15, {28*BLK}
    s_add_u32 s16, s12, s15
    s_add_u32 s12, s12, s13
    s_lshl_b32 s14, s10, 12
    s_add_u32 s14, s14, {ST}
    v_and_b32 v4, 31, v1
    v_lshrrev_b32 v5, 5, v1
    v_lshlrev_b32 v6, 7, v4
    v_lshl_add_u32 v6, v5, 6, v6
    s_mov_b32 m0, s15
    s_waitcnt lgkmcnt(0)
    """)
    stats_load(k, 14, STV, 6)
    k("buffer_load_dwordx4 v2, s[4:7], s16 offen lds")
    per = NT + 4
    for c in range(7):
        k(f"s_mov_b32 m0, s13")
        k(f"buffer_load_dwordx4 {ar(16*c,4)}, v2, s[4:7], s11 offen")
        for t in range(NT):
            k(f"buffer_load_dwordx4 v2, s[4:7], s12 offen offset:{t*1024} lds")
        for j in range(1, 4):
            k(f"buffer_load_dwordx4 {ar(16*c+4*j,4)}, v2, s[4:7], s11 offen offset:{j*1024}")
        if c < 6:
            k(f"""
            s_add_u32 s11, s11, 4096
            s_add_u32 s12, s12, {4*BLK}
            s_add_u32 s13, s13, {4*BLK}
            """)
    total = 7 * per
    k(f"v_add_u32 v7, 0x10000, v2")
    k(f"s_waitcnt vmcnt({total+1})")
    for i in range(0, 14, 2):
        pass
    k(f"""
    v_pk_add_f32 {vr(STV,2)}, {vr(STV,2)}, {vr(STV+2,2)}
    v_pk_add_f32 {vr(STV+4,2)}, {vr(STV+4,2)}, {vr(STV+6,2)}
    v_pk_add_f32 {vr(STV+8,2)}, {vr(STV+8,2)}, {vr(STV+10,2)}
    v_pk_add_f32 {vr(STV,2)}, {vr(STV,2)}, {vr(STV+4,2)}
    v_pk_add_f32 {vr(STV+8,2)}, {vr(STV+8,2)}, {vr(STV+12,2)}
    v_pk_add_f32 {vr(STV,2)}, {vr(STV,2)}, {vr(STV+8,2)}
    v_add_f32 v{STV}, v{STV}, v{STV+1}
    v_mul_f32 v{STV}, {hex(f2u(1.0/448))}, v{STV}
    v_mov_b32 v{STV+1}, v{STV}
    s_nop 1
    v_permlane32_swap_b32 v{STV}, v{STV+1}
    v_fma_f32 v{STV+2}, -v{STV}, v{STV}, v{STV+1}
    v_max_f32 v{STV+2}, 0, v{STV+2}
    v_add_f32 v{STV+2}, {hex(f2u(1e-5))}, v{STV+2}
    v_rsq_f32 v{RSTD}, v{STV+2}
    v_sub_f32 v{STV}, 0, v{STV}
    v_cvt_pk_bf16_f32 v{STV+3}, v{STV}, v{STV}
    v_and_b32 v{STV+4}, 0xffff0000, v{STV+3}
    v_sub_f32 v{STV+4}, v{STV}, v{STV+4}
    v_cvt_pk_bf16_f32 v{STV+4}, v{STV+4}, v{STV+4}
    s_mov_b32 s20, -1
    s_mov_b32 s21, 0
    v_cndmask_b32 v{MUF}, 0, v{STV+3}, s[20:21]
    v_cndmask_b32 v{MUF+1}, 0, v{STV+4}, s[20:21]
    v_mov_b32 v{MUF+2}, 0
    v_mov_b32 v{MUF+3}, 0
    """)
    BOUNCE = 29 * BLK
    if kind == "qkv":
        k(f"""
        s_lshl_b32 s17, s3, 8
        s_add_u32 s17, s17, {BOUNCE}
        v_lshl_add_u32 v14, v1, 2, s17
        ds_write_b32 v14, v{RSTD}
        v_lshl_add_u32 v14, v5, 4, s17
        s_waitcnt lgkmcnt(0)
        ds_read_b128 {vr(STV,4)}, v14
        ds_read_b128 {vr(STV+4,4)}, v14 offset:32
        ds_read_b128 {vr(STV+8,4)}, v14 offset:64
        ds_read_b128 {vr(STV+12,4)}, v14 offset:96
        """)
    def ldsrd(dst, off):
        if off < 65536: return f"ds_read_b128 {vr(dst,4)}, v2 offset:{off}"
        return f"ds_read_b128 {vr(dst,4)}, v7 offset:{off-65536}"
    def reads(c):
        buf = BB + (c % 2) * BSZ
        out = []
        nks = 4 if c < 7 else 1
        for j in range(nks):
            for t in range(NT):
                out.append(ldsrd(buf + (j*NT + t)*4, ((4*c + j) * NT + t) * 1024))
        return out
    def mfma(c, j, t):
        buf = BB + (c % 2) * BSZ
        bf = vr(buf + (j*NT + t)*4, 4)
        xf = ar(16*c + 4*j, 4) if c < 7 else vr(MUF, 4)
        acc = vr(ACC + 16*t, 16)
        cin = "0" if (c == 0 and j == 0) else acc
        if kind == "qkv" and t == 2:
            return f"v_mfma_f32_32x32x16_bf16 {acc}, {xf}, {bf}, {cin}"
        return f"v_mfma_f32_32x32x16_bf16 {acc}, {bf}, {xf}, {cin}"
    k(f"s_waitcnt vmcnt({total - per}) lgkmcnt(0)\ns_barrier")
    for l in reads(0): k(l)
    for c in range(7):
        k("s_waitcnt lgkmcnt(0)")
        for j in range(2):
            for t in range(NT): k(mfma(c, j, t))
        if c < 6:
            k(f"s_waitcnt vmcnt({total - per*(c+2)})\ns_barrier")
        for l in reads(c+1): k(l)
        for j in range(2, 4):
            for t in range(NT): k(mfma(c, j, t))
    k("s_waitcnt lgkmcnt(0)")
    for t in range(NT): k(mfma(7, 0, t))
    PK = BB
    if kind == "ffn1":
        k(f"""
        s_mul_i32 s11, s10, {112*1024}
        s_lshl_b32 s12, s8, 13
        s_add_u32 s11, s11, s12
        s_add_u32 s11, s11, {HF}
        s_add_u32 s12, s11, 4096
        """)
        k.nop(7)
        for t in range(NT):
            a = ACC + 16*t
            p = PK + 8*t
            for i in range(8):
                k(f"v_pk_mul_f32 {vr(a+2*i,2)}, {vr(a+2*i,2)}, {vr(RSTD,2)} op_sel_hi:[1,0]")
            for i in range(8):
                k(f"v_cvt_pk_bf16_f32 v{p+i}, v{a+2*i}, v{a+2*i+1}")
            for i in range(8):
                k(f"v_pk_max_i16 v{p+i}, v{p+i}, 0")
            sb = 11 if t < 2 else 12
            k(f"buffer_store_dwordx4 {vr(p,4)}, v2, s[4:7], s{sb} offen offset:{(t%2)*2048}")
            k(f"buffer_store_dwordx4 {vr(p+4,4)}, v2, s[4:7], s{sb} offen offset:{(t%2)*2048+1024}")
    else:
        k(f"""
        s_lshl_b32 s11, s8, 6
        s_add_u32 s11, s11, s10
        s_lshl_b32 s12, s11, 12
        s_add_u32 s12, s12, {KV}
        s_lshl_b32 s11, s11, 11
        s_add_u32 s11, s11, {QF}
        v_mul_f32 v14, {hex(f2u(QSCALE))}, v{RSTD}
        s_mov_b32 s22, 0x10000000
        s_mov_b32 s23, 0x10000000
        v_mov_b32 v15, 0x3f803f80
        """)
        k.nop(4)
        aq, ak, av = ACC, ACC + 16, ACC + 32
        for i in range(8):
            k(f"v_pk_mul_f32 {vr(aq+2*i,2)}, {vr(aq+2*i,2)}, {vr(14,2)} op_sel_hi:[1,0]")
        for i in range(8):
            k(f"v_pk_mul_f32 {vr(ak+2*i,2)}, {vr(ak+2*i,2)}, {vr(RSTD,2)} op_sel_hi:[1,0]")
        pk_, pq, pv = PK, PK + 8, PK + 16
        for i in range(8):
            k(f"v_cvt_pk_bf16_f32 v{pk_+i}, v{ak+2*i}, v{ak+2*i+1}")
        k(f"v_cndmask_b32 v{pk_+6}, v15, v{pk_+6}, s[20:21]")
        k(f"v_cndmask_b32 v{pk_+7}, v15, v{pk_+7}, s[20:21]")
        k(f"buffer_store_dwordx4 {vr(pk_,4)}, v2, s[4:7], s12 offen")
        k(f"buffer_store_dwordx4 {vr(pk_+4,4)}, v2, s[4:7], s12 offen offset:1024")
        k(f"v_pk_mul_f32 {vr(MUF,2)}, {vr(aq,2)}, {vr(ak,2)}")
        for i in range(1, 8):
            k(f"v_pk_fma_f32 {vr(MUF,2)}, {vr(aq+2*i,2)}, {vr(ak+2*i,2)}, {vr(MUF,2)}")
        k(f"v_add_f32 v{MUF}, v{MUF}, v{MUF+1}")
        k(f"v_mov_b32 v{MUF+1}, v{MUF}")
        for i in range(8):
            k(f"v_pk_mul_f32 {vr(av+2*i,2)}, {vr(av+2*i,2)}, {vr(STV+2*i,2)}")
        k(f"v_permlane32_swap_b32 v{MUF}, v{MUF+1}")
        for i in range(8):
            k(f"v_cvt_pk_bf16_f32 v{pv+i}, v{av+2*i}, v{av+2*i+1}")
        for i in range(8):
            k(f"v_cndmask_b32 v{pv+i}, v{pv+i}, v15, s[22:23]")
        k(f"buffer_store_dwordx4 {vr(pv,4)}, v2, s[4:7], s12 offen offset:2048")
        k(f"buffer_store_dwordx4 {vr(pv+4,4)}, v2, s[4:7], s12 offen offset:3072")
        k(f"v_add_f32 v{MUF}, v{MUF}, v{MUF+1}")
        k(f"v_sub_f32 v{MUF}, 0, v{MUF}")
        k(f"v_cndmask_b32 v{aq+12}, v{MUF}, v{aq+12}, s[20:21]")
        for i in range(8):
            k(f"v_cvt_pk_bf16_f32 v{pq+i}, v{aq+2*i}, v{aq+2*i+1}")
        k(f"buffer_store_dwordx4 {vr(pq,4)}, v2, s[4:7], s11 offen")
        k(f"buffer_store_dwordx4 {vr(pq+4,4)}, v2, s[4:7], s11 offen offset:1024")
    end(k)
    kernels.append((k, BB + 2*BSZ, 112, 32))
    return 29 * BLK + (1024 if kind == "qkv" else 0)

def gen_gemmB(kind):
    k = Kern(f"{kind}_kernel")
    n = k.name
    prologue(k, 224)
    if kind == "oproj":
        KS, AIN, WB, RES, XOUT, ST = 32, OF, WO_F, XA, XB, STB
    else:
        KS, AIN, WB, RES, XOUT, ST = 112, HF, W2_F, XB, XA, STA
    final = kind == "ffn2b"
    KW = KS // 4
    RING = min(KW, 14)
    ACC = 16
    RESV = 80
    RED = 104
    k(f"""
    s_mul_hi_u32 s9, s2, {(2**32 + 6)//7}
    s_mul_i32 s8, s9, 7
    s_sub_u32 s8, s2, s8
    s_and_b32 s20, s3, 1
    s_lshr_b32 s21, s3, 1
    s_lshl_b32 s10, s9, 1
    s_add_u32 s10, s10, s20
    s_xor_b32 s22, s10, 1
    s_mul_i32 s23, s3, {KW*1024}
    s_add_u32 s23, s23, {AIN}
    s_mul_i32 s11, s10, {KS*1024}
    s_add_u32 s11, s11, s23
    s_mul_i32 s12, s22, {KS*1024}
    s_add_u32 s12, s12, s23
    s_mul_i32 s13, s8, {KS*2048}
    s_mul_i32 s23, s3, {KW*2048}
    s_add_u32 s13, s13, s23
    s_add_u32 s13, s13, {WB}
    s_lshl_b32 s23, s21, 10
    v_add_u32 v4, s23, v2
    v_xor_b32 v5, 0x400, v4
    s_lshl_b32 s24, s8, 1
    s_add_u32 s24, s24, s21
    s_mul_i32 s14, s10, {28*1024}
    s_lshl_b32 s23, s24, 11
    s_add_u32 s14, s14, s23
    s_add_u32 s15, s14, {RES}
    """)
    if final:
        k("s_load_dwordx2 s[28:29], s[0:1], 48")
    k("s_waitcnt lgkmcnt(0)")
    k(f"buffer_load_dwordx4 {vr(RESV,4)}, v2, s[4:7], s15 offen")
    k(f"buffer_load_dwordx4 {vr(RESV+4,4)}, v2, s[4:7], s15 offen offset:1024")
    def loads(ks):
        slot = (ks % RING) * 16
        out = []
        if ks > 0 and ks % 4 == 0:
            out += ["s_add_u32 s11, s11, 4096", "s_add_u32 s12, s12, 4096"]
        if ks > 0 and ks % 2 == 0:
            out += ["s_add_u32 s13, s13, 4096"]
        out.append(f"buffer_load_dwordx4 {ar(slot,4)}, v4, s[4:7], s13 offen offset:{(ks%2)*2048}")
        out.append(f"buffer_load_dwordx4 {ar(slot+8,4)}, v2, s[4:7], s11 offen offset:{(ks%4)*1024}")
        out.append(f"buffer_load_dwordx4 {ar(slot+12,4)}, v2, s[4:7], s12 offen offset:{(ks%4)*1024}")
        out.append(f"buffer_load_dwordx4 {ar(slot+4,4)}, v5, s[4:7], s13 offen offset:{(ks%2)*2048}")
        return out
    for ks in range(RING):
        for l in loads(ks): k(l)
    for i in range(1, 4):
        k(f"s_xor_b32 s25, s3, {i}\ns_mul_i32 s25, s25, 12288\ns_add_u32 s25, s25, {(i-1)*4096}\nv_add_u32 v{8+i}, s25, v2")
    k("s_mul_i32 s25, s3, 12288\nv_add_u32 v8, s25, v2")
    issued = RING
    for ks in range(KW):
        slot = (ks % RING) * 16
        outstanding_after = (issued - ks - 1) * 4
        k(f"s_waitcnt vmcnt({outstanding_after})")
        for nu in range(2):
            for rho in range(2):
                i = 2*nu + rho
                acc = vr(ACC + 16*i, 16)
                cin = "0" if ks == 0 else acc
                k(f"v_mfma_f32_32x32x16_bf16 {acc}, {ar(slot+4*nu,4)}, {ar(slot+8+4*rho,4)}, {cin}")
        if issued < KW:
            for l in loads(issued): k(l)
            issued += 1
        if ks == 1:
            for i in range(8):
                k(f"v_lshlrev_b32 v{RESV+8+2*i}, 16, v{RESV+i}")
                k(f"v_and_b32 v{RESV+8+2*i+1}, 0xffff0000, v{RESV+i}")
    k.nop(10)
    for i in range(1, 4):
        for q in range(4):
            k(f"ds_write_b128 v{8+i}, {vr(ACC+16*i+4*q,4)} offset:{q*1024}")
    for i in range(8):
        k(f"v_pk_add_f32 {vr(ACC+2*i,2)}, {vr(ACC+2*i,2)}, {vr(RESV+8+2*i,2)}")
    k("s_waitcnt lgkmcnt(0)\ns_barrier")
    for j in range(12):
        k(f"ds_read_b128 {vr(RED+4*j,4)}, v8 offset:{j*1024}")
    for s in range(3):
        k(f"s_waitcnt lgkmcnt({8-4*s})")
        for i in range(8):
            k(f"v_pk_add_f32 {vr(ACC+2*i,2)}, {vr(ACC+2*i,2)}, {vr(RED+16*s+2*i,2)}")
    P = RESV
    for i in range(8):
        k(f"v_cvt_pk_bf16_f32 v{P+i}, v{ACC+2*i}, v{ACC+2*i+1}")
    if final:
        k(f"""
        s_mov_b32 s30, {2048*448*2}
        s_mov_b32 s31, 0x20000
        v_and_b32 v4, 31, v1
        v_lshrrev_b32 v5, 5, v1
        v_mul_u32_u24 v4, 896, v4
        v_lshl_add_u32 v4, v5, 4, v4
        s_mul_i32 s14, s10, {32*896}
        s_lshl_b32 s23, s24, 6
        s_add_u32 s14, s14, s23
        v_permlane32_swap_b32 v{P}, v{P+2}
        v_permlane32_swap_b32 v{P+1}, v{P+3}
        v_permlane32_swap_b32 v{P+4}, v{P+6}
        v_permlane32_swap_b32 v{P+5}, v{P+7}
        buffer_store_dwordx4 {vr(P,4)}, v4, s[28:31], s14 offen
        buffer_store_dwordx4 {vr(P+4,4)}, v4, s[28:31], s14 offen offset:32
        """)
    else:
        k(f"""
        s_add_u32 s15, s14, {XOUT}
        buffer_store_dwordx4 {vr(P,4)}, v2, s[4:7], s15 offen
        buffer_store_dwordx4 {vr(P+4,4)}, v2, s[4:7], s15 offen offset:1024
        """)
        S1, S2 = RED, RED + 2
        k(f"v_pk_add_f32 {vr(S1,2)}, {vr(ACC,2)}, {vr(ACC+2,2)}")
        k(f"v_pk_mul_f32 {vr(S2,2)}, {vr(ACC,2)}, {vr(ACC,2)}")
        k(f"v_pk_fma_f32 {vr(S2,2)}, {vr(ACC+2,2)}, {vr(ACC+2,2)}, {vr(S2,2)}")
        for i in range(2, 8):
            k(f"v_pk_add_f32 {vr(S1,2)}, {vr(S1,2)}, {vr(ACC+2*i,2)}")
            k(f"v_pk_fma_f32 {vr(S2,2)}, {vr(ACC+2*i,2)}, {vr(ACC+2*i,2)}, {vr(S2,2)}")
        k(f"""
        v_add_f32 v{S1}, v{S1}, v{S1+1}
        v_add_f32 v{S2}, v{S2}, v{S2+1}
        v_and_b32 v4, 31, v1
        v_lshrrev_b32 v5, 5, v1
        v_permlane32_swap_b32 v{S1}, v{S2}
        v_lshlrev_b32 v4, 7, v4
        v_lshl_add_u32 v4, v5, 6, v4
        v_add_f32 v{S1}, v{S1}, v{S2}
        s_lshl_b32 s14, s10, 12
        s_lshl_b32 s23, s24, 2
        s_add_u32 s14, s14, s23
        s_add_u32 s14, s14, {ST}
        buffer_store_dword v{S1}, v4, s[4:7], s14 offen
        """)
    end(k)
    kernels.append((k, 152, RING*16, 32))
    return 49152

def gen_att():
    k = Kern("att_kernel")
    n = k.name
    prologue(k, 256)
    Q = 16
    O = 48
    S = 112
    P = 144
    RED = 160
    k(f"""
    s_and_b32 s8, s2, 15
    s_lshr_b32 s9, s2, 4
    s_lshl_b32 s10, s8, 6
    s_lshl_b32 s11, s3, 4
    s_add_u32 s11, s11, s10
    s_lshl_b32 s11, s11, 12
    s_add_u32 s11, s11, {KV}
    s_add_u32 s14, s11, {16*4096}
    s_mov_b32 s15, 0x20000
    s_lshl_b32 s16, s9, 2
    s_add_u32 s16, s16, s10
    s_lshl_b32 s16, s16, 11
    s_add_u32 s16, s16, {QF}
    s_lshl_b32 s17, s3, 11
    s_waitcnt lgkmcnt(0)
    s_mov_b32 s12, s4
    s_mov_b32 s13, s5
    """)
    def kvloads(slot):
        return [f"buffer_load_dwordx4 {ar(slot*16+4*j,4)}, v2, s[12:15], s11 offen offset:{j*1024}" for j in range(4)] + ["s_add_u32 s11, s11, 4096"]
    def qload(i):
        return [f"s_xor_b32 s18, s17, {i*2048}", "s_add_u32 s18, s18, s16",
                f"buffer_load_dwordx4 {vr(Q+8*i,4)}, v2, s[4:7], s18 offen",
                f"buffer_load_dwordx4 {vr(Q+8*i+4,4)}, v2, s[4:7], s18 offen offset:1024"]
    for l in qload(0): k(l)
    for l in kvloads(0): k(l)
    for i in range(1, 4):
        for l in qload(i): k(l)
    for l in kvloads(1): k(l)
    for l in kvloads(2): k(l)
    for r in range(64): k(f"v_mov_b32 v{O+r}, 0")
    for r in range(8): k(f"v_mov_b32 v{P+8+r}, 0")
    for r in range(8): k(f"v_accvgpr_write_b32 a{48+8+r}, 0")
    for i in range(1, 4):
        k(f"s_xor_b32 s25, s3, {i}\ns_mul_i32 s25, s25, 12288\ns_add_u32 s25, s25, {(i-1)*4096}\nv_add_u32 v{8+i}, s25, v2")
    k("s_mul_i32 s25, s3, 12288\nv_add_u32 v8, s25, v2")
    def smf(slot, i, buf, c):
        d = vr(S + 16*buf, 16)
        return f"v_mfma_f32_32x32x16_bf16 {d}, {ar(slot*16+4*c,4)}, {vr(Q+8*i+4*c,4)}, {'0' if c == 0 else d}"
    def pvmf(slot, i, buf, c):
        d = vr(O + 16*i, 16)
        return f"v_mfma_f32_32x32x16_bf16 {d}, {ar(slot*16+8+4*c,4)}, {vr(P+8*buf+4*c,4)}, {d}"
    k("s_waitcnt vmcnt(8)")
    k(smf(0, 0, 0, 0)); k(smf(0, 0, 0, 1))
    k("s_mov_b32 s19, 4")
    k.nop(10)
    k(".p2align 6")
    k.label(f"{n}_loop")
    for u in range(16):
        t, i = u // 4, u % 4
        buf = u % 2
        nt_, ni = ((u + 1) // 4) % 4, (u + 1) % 4
        pt, pi = ((u - 1) // 4) % 4, (u - 1) % 4
        sb = S + 16*buf
        pb = P + 8*buf
        ex = [f"v_exp_f32 v{sb+r}, v{sb+r}" for r in range(16)]
        cv = [f"v_cvt_pk_bf16_f32 v{pb+r}, v{sb+2*r}, v{sb+2*r+1}" for r in range(8)]
        seq = []
        if i == 3:
            seq.append("s_waitcnt vmcnt(8)")
        seq.append(smf(nt_, ni, 1-buf, 0))
        seq += [ex[0], ex[1], ex[2], ex[3], cv[0], ex[4]]
        seq.append(smf(nt_, ni, 1-buf, 1))
        seq += [ex[5], cv[1], ex[6], ex[7], cv[2], ex[8]]
        seq.append(pvmf(pt, pi, 1-buf, 0))
        seq += [ex[9], cv[3], ex[10], ex[11], cv[4], ex[12]]
        seq.append(pvmf(pt, pi, 1-buf, 1))
        if i == 0:
            ld = kvloads(pt)
            seq += [ex[13], ld[0], cv[5], ld[1], ex[14], ld[2], ex[15], ld[3], cv[6], ld[4], cv[7]]
        elif u == 15:
            seq += [ex[13], cv[5], ex[14], ex[15], cv[6], "s_sub_u32 s19, s19, 1", cv[7], "s_cmp_lg_u32 s19, 0"]
        else:
            seq += [ex[13], cv[5], ex[14], ex[15], cv[6], "s_nop 0", cv[7]]
        for l in seq: k(l)
    k(f"s_cbranch_scc1 {n}_loop")
    k("s_nop 0")
    k(pvmf(3, 3, 1, 0)); k(pvmf(3, 3, 1, 1))
    for i in (1, 2):
        for q in range(4):
            k(f"ds_write_b128 v{8+i}, {vr(O+16*i+4*q,4)} offset:{q*1024}")
    k.nop(4)
    for q in range(4):
        k(f"ds_write_b128 v11, {vr(O+48+4*q,4)} offset:{q*1024}")
    k(f"""
    s_lshl_b32 s20, s9, 2
    s_add_u32 s20, s20, s3
    s_lshl_b32 s20, s20, 15
    s_lshl_b32 s21, s8, 11
    s_add_u32 s20, s20, s21
    s_add_u32 s20, s20, {OF}
    s_waitcnt lgkmcnt(0)
    s_barrier
    """)
    for j in range(12):
        k(f"ds_read_b128 {vr(RED+4*j,4)}, v8 offset:{j*1024}")
    for s in range(3):
        k(f"s_waitcnt lgkmcnt({8-4*s})")
        for i in range(8):
            k(f"v_pk_add_f32 {vr(O+2*i,2)}, {vr(O+2*i,2)}, {vr(RED+16*s+2*i,2)}")
    k(f"""
    v_mov_b32 v12, v{O+12}
    v_mov_b32 v13, v{O+12}
    s_mov_b32 s22, {hex(f2u(2.0**-40))}
    s_mov_b32 s23, {hex(f2u(2.0**40))}
    v_permlane32_swap_b32 v12, v13
    v_cmp_lt_f32 vcc, s22, v13
    v_cmp_gt_f32 s[24:25], s23, v13
    s_and_b64 vcc, vcc, s[24:25]
    s_cmp_eq_u64 vcc, exec
    s_cbranch_scc0 {n}_slow
    """)
    k.label(f"{n}_fin")
    k(f"v_rcp_f32 v12, v13\ns_nop 0")
    for i in range(8):
        k(f"v_pk_mul_f32 {vr(O+2*i,2)}, {vr(O+2*i,2)}, {vr(12,2)} op_sel_hi:[1,0]")
    for i in range(8):
        k(f"v_cvt_pk_bf16_f32 v{P+i}, v{O+2*i}, v{O+2*i+1}")
    k(f"""
    buffer_store_dwordx4 {vr(P,4)}, v2, s[4:7], s20 offen
    buffer_store_dwordx4 {vr(P+4,4)}, v2, s[4:7], s20 offen offset:1024
    s_endpgm
    """)
    k.label(f"{n}_slow")
    k(f"""
    s_waitcnt vmcnt(0)
    s_lshl_b32 s11, s10, 12
    s_add_u32 s11, s11, {KV}
    s_mov_b32 s19, 64
    v_mov_b32 v14, 0xff800000
    """)
    k.label(f"{n}_slow1")
    k(f"""
    buffer_load_dwordx4 a[0:3], v2, s[4:7], s11 offen
    buffer_load_dwordx4 a[4:7], v2, s[4:7], s11 offen offset:1024
    s_add_u32 s11, s11, 4096
    s_waitcnt vmcnt(0)
    {smf(0,0,0,0)}
    {smf(0,0,0,1)}
    """)
    k.nop(12)
    for r in range(8):
        k(f"v_max3_f32 v14, v{S+2*r}, v{S+2*r+1}, v14")
    k(f"""
    s_sub_u32 s19, s19, 1
    s_cmp_lg_u32 s19, 0
    s_cbranch_scc1 {n}_slow1
    v_mov_b32 v15, v14
    s_nop 1
    v_permlane32_swap_b32 v14, v15
    v_max_f32 v14, v14, v15
    s_lshl_b32 s11, s10, 12
    s_add_u32 s11, s11, {KV}
    s_mov_b32 s19, 64
    """)
    for r in range(16): k(f"v_mov_b32 v{O+r}, 0")
    k.label(f"{n}_slow2")
    for j in range(4):
        k(f"buffer_load_dwordx4 {ar(4*j,4)}, v2, s[4:7], s11 offen offset:{j*1024}")
    k(f"""
    s_add_u32 s11, s11, 4096
    s_waitcnt vmcnt(0)
    {smf(0,0,0,0)}
    {smf(0,0,0,1)}
    """)
    k.nop(12)
    for r in range(16): k(f"v_sub_f32 v{S+r}, v{S+r}, v14")
    for r in range(16): k(f"v_exp_f32 v{S+r}, v{S+r}")
    k("s_nop 0")
    for r in range(8): k(f"v_cvt_pk_bf16_f32 v{P+r}, v{S+2*r}, v{S+2*r+1}")
    k("s_nop 1")
    k(pvmf(0, 0, 0, 0)); k(pvmf(0, 0, 0, 1))
    k(f"""
    s_sub_u32 s19, s19, 1
    s_cmp_lg_u32 s19, 0
    s_cbranch_scc1 {n}_slow2
    """)
    k.nop(12)
    k(f"""
    v_mov_b32 v12, v{O+12}
    v_mov_b32 v13, v{O+12}
    s_nop 1
    v_permlane32_swap_b32 v12, v13
    s_branch {n}_fin
    """)
    end(k)
    kernels.append((k, 208, 64, 32))
    return 49152

def build(path, extra_launch=0):
    gen_prep()
    l_qkv = gen_gemmA("qkv")
    l_att = gen_att()
    l_op = gen_gemmB("oproj")
    l_f1 = gen_gemmA("ffn1")
    l_f2 = gen_gemmB("ffn2a")
    l_f2b = gen_gemmB("ffn2b")
    launches = [("prep_kernel", 238, 33792)]
    for layer in range(2):
        launches += [("qkv_kernel", 256, l_qkv), ("att_kernel", 256, l_att), ("oproj_kernel", 224, l_op),
                     ("ffn1_kernel", 224, l_f1), ("ffn2a_kernel" if layer == 0 else "ffn2b_kernel", 224, l_f2)]
    hdr = open("cdna_kernels/%s.s.ref" % NAME).read().split("; Override")[0]
    out = hdr
    for nm, g, lds in launches:
        out += f"; @launch kernel={nm} grid=({g},1,1) block=(256,1,1) lds={lds}\n"
    out += '.amdgcn_target "amdgcn-amd-amdhsa--gfx950"\n.text\n'
    nerr = 0
    for k, v, a, s in kernels:
        for e in check_kernel(k):
            print("HAZARD", e); nerr += 1
        out += f".globl {k.name}\n.p2align 8\n.type {k.name},@function\n{k.name}:\n" + k.text() + "\n"
    out += '.section .rodata,"a"\n'
    for k, v, a, s in kernels:
        acc = (v + 3) // 4 * 4
        out += f""".p2align 6
.amdhsa_kernel {k.name}
  .amdhsa_next_free_vgpr {acc + a if a else v}
  .amdhsa_next_free_sgpr {s}
  .amdhsa_accum_offset {acc}
  .amdhsa_group_segment_fixed_size 0
  .amdhsa_kernarg_size 72
  .amdhsa_user_sgpr_count 2
  .amdhsa_user_sgpr_kernarg_segment_ptr 1
  .amdhsa_system_sgpr_workgroup_id_x 1
.end_amdhsa_kernel
"""
    open(path, "w").write(out)
    print("wrote", path, len(out), "bytes; hazards:", nerr)

if __name__ == "__main__":
    build(sys.argv[1] if len(sys.argv) > 1 else "cdna_kernels/%s.s" % NAME)
```

```python
import sys, math
from asmlib import *

NAME = "interleave_layers__mha_block__dense_activation_relu__prompt"

WQKV_F = 0x000000
W1_F   = 0x200000
W2_F   = 0x400000
WO_F   = 0x600000
XA     = 0x800000
XB     = 0xA00000
STA    = 0xC00000
STB    = 0xC80000
QF     = 0x1000000
KV     = 0x1200000
OF     = 0x1600000
HF     = 0x1800000
WS_USED = 0x2000000

QSCALE = (28 ** -0.5) * math.log2(math.e)
import struct
def f2u(x): return struct.unpack("<I", struct.pack("<f", x))[0]

kernels = []
import os
STAMP = os.environ.get("STAMP", "0") == "1"
TS = 0x1F80000
def stamp(k, i):
    if STAMP:
        k(f"s_memrealtime s[{40+2*i}:{41+2*i}]")
        if i in (2, 3): k(f"s_memtime s[{52+2*i}:{53+2*i}]")
        k.nstamp = max(getattr(k, "nstamp", 0), i + 1)
def stamp_flush(k):
    if not STAMP: return
    n = k.nstamp
    lab = f"{k.name}_ts{len(k.lines)}"
    k(f"""
    s_waitcnt vmcnt(0) lgkmcnt(0)
    s_memrealtime s[{40+2*n}:{41+2*n}]
    s_load_dwordx2 s[36:37], s[0:1], 56
    s_waitcnt lgkmcnt(0)
    s_lshr_b32 s36, s36, 9
    s_and_b32 s36, s36, 15
    s_lshl_b32 s36, s36, 15
    s_lshl_b32 s37, s2, 7
    s_add_u32 s36, s36, s37
    s_lshl_b32 s37, s3, 5
    s_add_u32 s36, s36, s37
    s_add_u32 s36, s36, {TS}
    v_mov_b32 v0, 0
    """)
    for i in range(n + 1):
        k(f"v_mov_b32 v3, s{40+2*i}")
        k(f"buffer_store_dword v3, v0, s[4:7], s36 offen offset:{4*i}")
    k("s_sub_u32 s56, s58, s56\nv_mov_b32 v3, s56\nbuffer_store_dword v3, v0, s[4:7], s36 offen offset:28")

def prologue(k, nwg):
    k(f"""
    s_cmp_ge_u32 s2, {nwg}
    s_cbranch_scc1 {k.name}_end
    s_load_dwordx2 s[4:5], s[0:1], 64
    """)
    stamp(k, 0)
    k(f"""
    v_lshrrev_b32 v3, 6, v0
    v_and_b32 v1, 63, v0
    s_mov_b32 s6, {WS_USED}
    v_readfirstlane_b32 s3, v3
    s_mov_b32 s7, 0x20000
    v_lshlrev_b32 v2, 4, v1
    """)

def end(k):
    stamp_flush(k)
    k.label(f"{k.name}_end")
    k("s_endpgm")

def gen_prep():
    k = Kern("prep_kernel")
    prologue(k, 238)
    n = k.name
    k(f"""
    s_mov_b32 s11, 0x20000
    s_mov_b64 s[20:21], -1
    s_mov_b64 s[22:23], -1
    s_mov_b32 s18, 7
    s_mov_b32 s19, 0
    s_cmp_ge_u32 s2, 174
    s_cbranch_scc1 {n}_x
    s_cmp_ge_u32 s2, 160
    s_cbranch_scc1 {n}_wo
    s_cmp_ge_u32 s2, 104
    s_cbranch_scc1 {n}_w2
    s_cmp_ge_u32 s2, 48
    s_cbranch_scc1 {n}_w1
    """)
    k(f"""
    s_load_dwordx2 s[8:9], s[0:1], 8
    s_mov_b32 s10, {448*1344*2}
    s_lshr_b32 s24, s2, 4
    s_and_b32 s25, s2, 15
    s_mov_b32 s12, 2688
    s_mul_i32 s13, s24, 896
    s_mul_i32 s26, s25, 56
    s_add_u32 s13, s13, s26
    s_mul_i32 s26, s3, {112*2688}
    s_add_u32 s13, s13, s26
    s_mov_b32 s14, {16*2688}
    s_mov_b32 s15, {16*2688}
    s_mul_i32 s26, s25, {29*3072}
    s_lshl_b32 s27, s24, 10
    s_add_u32 s26, s26, s27
    s_add_u32 s19, s26, {WQKV_F + 28*3072}
    s_mul_i32 s27, s3, {7*3072}
    s_add_u32 s16, s26, s27
    s_add_u32 s16, s16, {WQKV_F}
    s_mov_b32 s17, 3072
    s_mov_b32 s20, 0x0fffffff
    s_mov_b32 s21, 0x0fffffff
    s_mov_b32 s22, 0x0fffffff
    s_mov_b32 s23, 0x0fffffff
    s_branch {n}_w
    """)
    k.label(f"{n}_w1")
    k(f"""
    s_load_dwordx2 s[8:9], s[0:1], 32
    s_mov_b32 s10, {448*1792*2}
    s_sub_u32 s24, s2, 48
    s_mov_b32 s12, 3584
    s_lshl_b32 s13, s24, 6
    s_mul_i32 s26, s3, {112*3584}
    s_add_u32 s13, s13, s26
    s_mov_b32 s14, {16*3584}
    s_mov_b32 s15, {16*3584}
    s_lshr_b32 s25, s24, 2
    s_and_b32 s27, s24, 3
    s_mul_i32 s26, s25, {29*4096}
    s_lshl_b32 s27, s27, 10
    s_add_u32 s26, s26, s27
    s_add_u32 s19, s26, {W1_F + 28*4096}
    s_mul_i32 s27, s3, {7*4096}
    s_add_u32 s16, s26, s27
    s_add_u32 s16, s16, {W1_F}
    s_mov_b32 s17, 4096
    s_branch {n}_w
    """)
    k.label(f"{n}_w2")
    k(f"""
    s_load_dwordx2 s[8:9], s[0:1], 40
    s_mov_b32 s10, {448*1792*2}
    s_sub_u32 s24, s2, 104
    s_lshr_b32 s25, s24, 2
    s_and_b32 s24, s24, 3
    s_mov_b32 s12, 896
    s_lshl_b32 s13, s25, 6
    s_mul_i32 s26, s24, {448*896}
    s_add_u32 s13, s13, s26
    s_mul_i32 s26, s3, {112*896}
    s_add_u32 s13, s13, s26
    s_mov_b32 s14, {16*896}
    s_mov_b32 s15, {16*896}
    s_lshr_b32 s26, s25, 1
    s_mul_i32 s26, s26, {112*2048}
    s_and_b32 s27, s25, 1
    s_lshl_b32 s27, s27, 10
    s_add_u32 s26, s26, s27
    s_mul_i32 s27, s24, {28*2048}
    s_add_u32 s26, s26, s27
    s_mul_i32 s27, s3, {7*2048}
    s_add_u32 s16, s26, s27
    s_add_u32 s16, s16, {W2_F}
    s_mov_b32 s17, 2048
    s_branch {n}_w
    """)
    k.label(f"{n}_wo")
    k(f"""
    s_load_dwordx2 s[8:9], s[0:1], 16
    s_mov_b32 s10, {448*448*2}
    s_sub_u32 s25, s2, 160
    s_mov_b32 s12, 896
    s_lshl_b32 s13, s25, 6
    s_mul_i32 s26, s3, {112*896}
    s_add_u32 s13, s13, s26
    s_mov_b32 s14, {16*896}
    s_mov_b32 s15, {12*896}
    s_lshr_b32 s26, s25, 1
    s_mul_i32 s26, s26, {32*2048}
    s_and_b32 s27, s25, 1
    s_lshl_b32 s27, s27, 10
    s_add_u32 s26, s26, s27
    s_lshl_b32 s27, s3, 14
    s_add_u32 s16, s26, s27
    s_add_u32 s16, s16, {WO_F}
    s_mov_b32 s17, 2048
    s_mov_b32 s18, 8
    s_mov_b32 s23, 0
    """)
    k.label(f"{n}_w")
    k(f"""
    v_lshrrev_b32 v4, 2, v1
    v_mul_lo_u32 v4, v4, s12
    v_and_b32 v6, 3, v1
    v_lshl_add_u32 v4, v6, 4, v4
    s_lshl_b32 s28, s3, 13
    v_lshrrev_b32 v5, 5, v1
    v_lshlrev_b32 v5, 8, v5
    v_bfe_u32 v7, v1, 2, 2
    v_lshl_add_u32 v5, v7, 6, v5
    v_bfe_u32 v7, v1, 4, 1
    v_lshl_add_u32 v5, v7, 5, v5
    v_lshl_add_u32 v5, v6, 3, v5
    v_add_u32 v5, s28, v5
    s_mov_b32 m0, s28
    s_waitcnt lgkmcnt(0)
    """)
    for b in range(8):
        if b == 7:
            k(f"s_cmp_eq_u32 s18, 7\ns_cbranch_scc1 {n}_w_l7")
        k(f"buffer_load_dwordx4 v4, s[8:11], s13 offen lds")
        if b < 7:
            k(f"""
            s_add_u32 s13, s13, {'s14' if b % 2 == 0 else 's15'}
            s_add_u32 s28, s28, 1024
            s_mov_b32 m0, s28
            s_nop 0
            """)
    k.label(f"{n}_w_l7")
    k("""
    v_mov_b32 v8, 0
    v_mov_b32 v9, 0x3f803f80
    s_waitcnt vmcnt(0)
    """)
    for b in range(8):
        k(f"ds_read_b64_tr_b16 {vr(16+4*b,2)}, v5 offset:{b*1024}")
        k(f"ds_read_b64_tr_b16 {vr(18+4*b,2)}, v5 offset:{b*1024+512}")
        if b == 6:
            k("s_waitcnt lgkmcnt(0)")
    k("s_waitcnt lgkmcnt(0)")
    for b in range(8):
        if b == 7:
            k(f"s_cmp_eq_u32 s18, 7\ns_cbranch_scc1 {n}_w_s7")
        for r in range(4):
            m = "s[22:23]" if (b % 2 == 1 and r >= 2) else "s[20:21]"
            k(f"v_cndmask_b32 v{16+4*b+r}, 0, v{16+4*b+r}, {m}")
        k(f"buffer_store_dwordx4 {vr(16+4*b,4)}, v2, s[4:7], s16 offen")
        k("s_add_u32 s16, s16, s17")
        for r in range(4):
            k(f"v_dot2c_f32_bf16 v8, v{16+4*b+r}, v9")
    k.label(f"{n}_w_s7")
    k(f"""
    s_cmp_eq_u32 s19, 0
    s_cbranch_scc1 {n}_end
    """)
    k(f"""
    s_nop 2
    v_mov_b32 v10, v8
    s_nop 1
    v_permlane32_swap_b32 v8, v10
    v_add_f32 v8, v8, v10
    s_lshl_b32 s28, s3, 8
    v_lshlrev_b32 v11, 2, v1
    v_add_u32 v12, s28, v11
    ds_write_b32 v12, v8 offset:32768
    s_waitcnt lgkmcnt(0)
    s_barrier
    s_cmp_lg_u32 s3, 0
    s_cbranch_scc1 {n}_end
    ds_read_b32 v12, v11 offset:{32768+256}
    ds_read_b32 v13, v11 offset:{32768+512}
    ds_read_b32 v14, v11 offset:{32768+768}
    s_waitcnt lgkmcnt(0)
    v_add_f32 v8, v8, v12
    v_add_f32 v13, v13, v14
    v_add_f32 v8, v8, v13
    v_cvt_pk_bf16_f32 v12, v8, v8
    v_and_b32 v13, 0xffff0000, v12
    v_sub_f32 v13, v8, v13
    v_cvt_pk_bf16_f32 v12, v8, v13
    s_mov_b32 s20, -1
    s_mov_b32 s21, 0
    v_cndmask_b32 v16, 0, v12, s[20:21]
    v_cndmask_b32 v17, 0, v12, s[20:21]
    v_mov_b32 v18, 0
    v_mov_b32 v19, 0
    buffer_store_dwordx4 v[16:19], v2, s[4:7], s19 offen
    s_endpgm
    """)
    k.label(f"{n}_x")
    k(f"""
    s_load_dwordx2 s[8:9], s[0:1], 0
    s_mov_b32 s10, {2048*448*2}
    s_sub_u32 s24, s2, 174
    s_mul_i32 s13, s24, {32*896}
    s_mul_i32 s26, s3, {7*32}
    s_add_u32 s13, s13, s26
    v_and_b32 v5, 31, v1
    v_lshrrev_b32 v6, 5, v1
    v_mul_u32_u24 v4, 896, v5
    v_lshl_add_u32 v4, v6, 4, v4
    s_mul_i32 s16, s24, {28*1024}
    s_mul_i32 s26, s3, {7*1024}
    s_add_u32 s16, s16, s26
    s_add_u32 s16, s16, {XA}
    s_waitcnt lgkmcnt(0)
    """)
    for b in range(7):
        k(f"buffer_load_dwordx4 {vr(16+4*b,4)}, v4, s[8:11], s13 offen offset:{b*32}")
    k(f"""
    v_mov_b32 v8, 0
    v_mov_b32 v10, 0
    v_mov_b32 v9, 0x3f803f80
    v_lshlrev_b32 v7, 7, v5
    v_lshl_add_u32 v7, v6, 6, v7
    s_lshl_b32 s26, s24, 12
    s_lshl_b32 s27, s3, 4
    s_add_u32 s26, s26, s27
    s_add_u32 s26, s26, {STA}
    """)
    for b in range(7):
        k(f"s_waitcnt vmcnt({6-b + b})" if False else f"s_waitcnt vmcnt({6})" if False else "")
        k(f"s_waitcnt vmcnt(6)")
        r = 16 + 4*b
        k(f"v_permlane32_swap_b32 v{r}, v{r+2}")
        k(f"v_permlane32_swap_b32 v{r+1}, v{r+3}")
        off = b * 1024
        if off < 4096:
            k(f"buffer_store_dwordx4 {vr(r,4)}, v2, s[4:7], s16 offen offset:{off}")
        else:
            if off == 4096: k("s_add_u32 s16, s16, 4096")
            k(f"buffer_store_dwordx4 {vr(r,4)}, v2, s[4:7], s16 offen offset:{off-4096}")
        for j in range(4):
            k(f"v_dot2c_f32_bf16 v8, v{r+j}, v9")
        for j in range(4):
            k(f"v_dot2c_f32_bf16 v10, v{r+j}, v{r+j}")
    k(f"""
    s_nop 2
    v_permlane32_swap_b32 v8, v10
    v_add_f32 v12, v8, v10
    v_mov_b32 v13, 0
    v_mov_b32 v14, 0
    v_mov_b32 v15, 0
    buffer_store_dwordx4 v[12:15], v7, s[4:7], s26 offen
    """)
    end(k)
    kernels.append((k, 48, 0, 32))

def stats_load(k, st_off_s, vbase, vaddr):
    k(f"""
    buffer_load_dwordx4 {vr(vbase,4)}, v{vaddr}, s[4:7], s{st_off_s} offen
    buffer_load_dwordx4 {vr(vbase+4,4)}, v{vaddr}, s[4:7], s{st_off_s} offen offset:16
    buffer_load_dwordx4 {vr(vbase+8,4)}, v{vaddr}, s[4:7], s{st_off_s} offen offset:32
    buffer_load_dwordx2 {vr(vbase+12,2)}, v{vaddr}, s[4:7], s{st_off_s} offen offset:48
    """)

def gen_gemmA(kind):
    NT = 3 if kind == "qkv" else 4
    nwg = 256 if kind == "qkv" else 224
    k = Kern(f"{kind}_kernel")
    n = k.name
    prologue(k, nwg)
    XIN, ST = (XA, STA) if kind == "qkv" else (XB, STB)
    WB = WQKV_F if kind == "qkv" else W1_F
    BLK = NT * 1024
    ACC = 16
    BB = 96
    BSZ = 4 * NT * 4
    STV = 80
    MUF = 8
    RSTD = 12
    if kind == "qkv":
        k("""
        s_lshr_b32 s8, s2, 3
        s_lshr_b32 s9, s8, 4
        s_and_b32 s8, s8, 15
        s_and_b32 s10, s2, 7
        s_lshl_b32 s10, s10, 1
        s_add_u32 s9, s9, s10
        """)
    else:
        k(f"""
        s_lshr_b32 s8, s2, 3
        s_cmp_ge_u32 s8, 14
        s_cselect_b32 s9, 1, 0
        s_mul_i32 s10, s9, 14
        s_sub_u32 s8, s8, s10
        s_and_b32 s10, s2, 7
        s_lshl_b32 s10, s10, 1
        s_add_u32 s9, s9, s10
        """)
    k(f"""
    s_lshl_b32 s10, s9, 2
    s_add_u32 s10, s10, s3
    s_mul_i32 s11, s10, {28*1024}
    s_add_u32 s11, s11, {XIN}
    s_mul_i32 s13, s3, {BLK}
    s_mul_i32 s12, s8, {29*BLK}
    s_add_u32 s12, s12, {WB}
    s_min_u32 s15, s3, {NT-1}
    s_lshl_b32 s15, s15, 10
    s_add_u32 s15, s15, {28*BLK}
    s_add_u32 s16, s12, s15
    s_add_u32 s12, s12, s13
    s_lshl_b32 s14, s10, 12
    s_add_u32 s14, s14, {ST}
    v_and_b32 v4, 31, v1
    v_lshrrev_b32 v5, 5, v1
    v_lshlrev_b32 v6, 7, v4
    v_lshl_add_u32 v6, v5, 6, v6
    s_mov_b32 m0, s15
    s_waitcnt lgkmcnt(0)
    """)
    stats_load(k, 14, STV, 6)
    k("buffer_load_dwordx4 v2, s[4:7], s16 offen lds")
    per = NT + 4
    for c in range(7):
        k(f"s_mov_b32 m0, s13")
        k(f"buffer_load_dwordx4 {ar(16*c,4)}, v2, s[4:7], s11 offen")
        for t in range(NT):
            k(f"buffer_load_dwordx4 v2, s[4:7], s12 offen offset:{t*1024} lds")
        for j in range(1, 4):
            k(f"buffer_load_dwordx4 {ar(16*c+4*j,4)}, v2, s[4:7], s11 offen offset:{j*1024}")
        if c < 6:
            k(f"""
            s_add_u32 s11, s11, 4096
            s_add_u32 s12, s12, {4*BLK}
            s_add_u32 s13, s13, {4*BLK}
            """)
    total = 7 * per
    k(f"v_add_u32 v7, 0x10000, v2")
    stamp(k, 1)
    k(f"s_waitcnt vmcnt({total+1})")
    for i in range(0, 14, 2):
        pass
    k(f"""
    v_pk_add_f32 {vr(STV,2)}, {vr(STV,2)}, {vr(STV+2,2)}
    v_pk_add_f32 {vr(STV+4,2)}, {vr(STV+4,2)}, {vr(STV+6,2)}
    v_pk_add_f32 {vr(STV+8,2)}, {vr(STV+8,2)}, {vr(STV+10,2)}
    v_pk_add_f32 {vr(STV,2)}, {vr(STV,2)}, {vr(STV+4,2)}
    v_pk_add_f32 {vr(STV+8,2)}, {vr(STV+8,2)}, {vr(STV+12,2)}
    v_pk_add_f32 {vr(STV,2)}, {vr(STV,2)}, {vr(STV+8,2)}
    v_add_f32 v{STV}, v{STV}, v{STV+1}
    v_mul_f32 v{STV}, {hex(f2u(1.0/448))}, v{STV}
    v_mov_b32 v{STV+1}, v{STV}
    s_nop 1
    v_permlane32_swap_b32 v{STV}, v{STV+1}
    v_fma_f32 v{STV+2}, -v{STV}, v{STV}, v{STV+1}
    v_max_f32 v{STV+2}, 0, v{STV+2}
    v_add_f32 v{STV+2}, {hex(f2u(1e-5))}, v{STV+2}
    v_rsq_f32 v{RSTD}, v{STV+2}
    v_sub_f32 v{STV}, 0, v{STV}
    v_cvt_pk_bf16_f32 v{STV+3}, v{STV}, v{STV}
    v_and_b32 v{STV+4}, 0xffff0000, v{STV+3}
    v_sub_f32 v{STV+4}, v{STV}, v{STV+4}
    v_cvt_pk_bf16_f32 v{STV+4}, v{STV+4}, v{STV+4}
    s_mov_b32 s20, -1
    s_mov_b32 s21, 0
    v_cndmask_b32 v{MUF}, 0, v{STV+3}, s[20:21]
    v_cndmask_b32 v{MUF+1}, 0, v{STV+4}, s[20:21]
    v_mov_b32 v{MUF+2}, 0
    v_mov_b32 v{MUF+3}, 0
    """)
    BOUNCE = 29 * BLK
    if kind == "qkv":
        k(f"""
        s_lshl_b32 s17, s3, 8
        s_add_u32 s17, s17, {BOUNCE}
        v_lshl_add_u32 v14, v1, 2, s17
        ds_write_b32 v14, v{RSTD}
        v_lshl_add_u32 v14, v5, 4, s17
        s_waitcnt lgkmcnt(0)
        ds_read_b128 {vr(STV,4)}, v14
        ds_read_b128 {vr(STV+4,4)}, v14 offset:32
        ds_read_b128 {vr(STV+8,4)}, v14 offset:64
        ds_read_b128 {vr(STV+12,4)}, v14 offset:96
        """)
    def ldsrd(dst, off):
        if off < 65536: return f"ds_read_b128 {vr(dst,4)}, v2 offset:{off}"
        return f"ds_read_b128 {vr(dst,4)}, v7 offset:{off-65536}"
    def reads(c):
        buf = BB + (c % 2) * BSZ
        out = []
        nks = 4 if c < 7 else 1
        for j in range(nks):
            for t in range(NT):
                out.append(ldsrd(buf + (j*NT + t)*4, ((4*c + j) * NT + t) * 1024))
        return out
    def mfma(c, j, t):
        buf = BB + (c % 2) * BSZ
        bf = vr(buf + (j*NT + t)*4, 4)
        xf = ar(16*c + 4*j, 4) if c < 7 else vr(MUF, 4)
        acc = vr(ACC + 16*t, 16)
        cin = "0" if (c == 0 and j == 0) else acc
        if kind == "qkv" and t == 2:
            return f"v_mfma_f32_32x32x16_bf16 {acc}, {xf}, {bf}, {cin}"
        return f"v_mfma_f32_32x32x16_bf16 {acc}, {bf}, {xf}, {cin}"
    k(f"s_waitcnt vmcnt({total - per}) lgkmcnt(0)\ns_barrier")
    stamp(k, 2)
    for l in reads(0): k(l)
    for c in range(7):
        k("s_waitcnt lgkmcnt(0)")
        for j in range(2):
            for t in range(NT): k(mfma(c, j, t))
        if c < 6:
            k(f"s_waitcnt vmcnt({total - per*(c+2)})\ns_barrier")
        for l in reads(c+1): k(l)
        for j in range(2, 4):
            for t in range(NT): k(mfma(c, j, t))
    k("s_waitcnt lgkmcnt(0)")
    for t in range(NT): k(mfma(7, 0, t))
    stamp(k, 3)
    PK = BB
    if kind == "ffn1":
        k(f"""
        s_mul_i32 s11, s10, {112*1024}
        s_lshl_b32 s12, s8, 13
        s_add_u32 s11, s11, s12
        s_add_u32 s11, s11, {HF}
        s_add_u32 s12, s11, 4096
        """)
        k.nop(7)
        for t in range(NT):
            a = ACC + 16*t
            p = PK + 8*t
            for i in range(8):
                k(f"v_pk_mul_f32 {vr(a+2*i,2)}, {vr(a+2*i,2)}, {vr(RSTD,2)} op_sel_hi:[1,0]")
            for i in range(8):
                k(f"v_cvt_pk_bf16_f32 v{p+i}, v{a+2*i}, v{a+2*i+1}")
            for i in range(8):
                k(f"v_pk_max_i16 v{p+i}, v{p+i}, 0")
            sb = 11 if t < 2 else 12
            k(f"buffer_store_dwordx4 {vr(p,4)}, v2, s[4:7], s{sb} offen offset:{(t%2)*2048}")
            k(f"buffer_store_dwordx4 {vr(p+4,4)}, v2, s[4:7], s{sb} offen offset:{(t%2)*2048+1024}")
    else:
        k(f"""
        s_lshl_b32 s11, s8, 6
        s_add_u32 s11, s11, s10
        s_lshl_b32 s12, s11, 12
        s_add_u32 s12, s12, {KV}
        s_lshl_b32 s11, s11, 11
        s_add_u32 s11, s11, {QF}
        v_mul_f32 v14, {hex(f2u(QSCALE))}, v{RSTD}
        s_mov_b32 s22, 0x10000000
        s_mov_b32 s23, 0x10000000
        v_mov_b32 v15, 0x3f803f80
        """)
        k.nop(4)
        aq, ak, av = ACC, ACC + 16, ACC + 32
        for i in range(8):
            k(f"v_pk_mul_f32 {vr(aq+2*i,2)}, {vr(aq+2*i,2)}, {vr(14,2)} op_sel_hi:[1,0]")
        for i in range(8):
            k(f"v_pk_mul_f32 {vr(ak+2*i,2)}, {vr(ak+2*i,2)}, {vr(RSTD,2)} op_sel_hi:[1,0]")
        pk_, pq, pv = PK, PK + 8, PK + 16
        for i in range(8):
            k(f"v_cvt_pk_bf16_f32 v{pk_+i}, v{ak+2*i}, v{ak+2*i+1}")
        k(f"v_cndmask_b32 v{pk_+6}, v15, v{pk_+6}, s[20:21]")
        k(f"v_cndmask_b32 v{pk_+7}, v15, v{pk_+7}, s[20:21]")
        k(f"buffer_store_dwordx4 {vr(pk_,4)}, v2, s[4:7], s12 offen")
        k(f"buffer_store_dwordx4 {vr(pk_+4,4)}, v2, s[4:7], s12 offen offset:1024")
        k(f"v_pk_mul_f32 {vr(MUF,2)}, {vr(aq,2)}, {vr(ak,2)}")
        for i in range(1, 8):
            k(f"v_pk_fma_f32 {vr(MUF,2)}, {vr(aq+2*i,2)}, {vr(ak+2*i,2)}, {vr(MUF,2)}")
        k(f"v_add_f32 v{MUF}, v{MUF}, v{MUF+1}")
        k(f"v_mov_b32 v{MUF+1}, v{MUF}")
        for i in range(8):
            k(f"v_pk_mul_f32 {vr(av+2*i,2)}, {vr(av+2*i,2)}, {vr(STV+2*i,2)}")
        k(f"v_permlane32_swap_b32 v{MUF}, v{MUF+1}")
        for i in range(8):
            k(f"v_cvt_pk_bf16_f32 v{pv+i}, v{av+2*i}, v{av+2*i+1}")
        for i in range(8):
            k(f"v_cndmask_b32 v{pv+i}, v{pv+i}, v15, s[22:23]")
        k(f"buffer_store_dwordx4 {vr(pv,4)}, v2, s[4:7], s12 offen offset:2048")
        k(f"buffer_store_dwordx4 {vr(pv+4,4)}, v2, s[4:7], s12 offen offset:3072")
        k(f"v_add_f32 v{MUF}, v{MUF}, v{MUF+1}")
        k(f"v_sub_f32 v{MUF}, 0, v{MUF}")
        k(f"v_cndmask_b32 v{aq+12}, v{MUF}, v{aq+12}, s[20:21]")
        for i in range(8):
            k(f"v_cvt_pk_bf16_f32 v{pq+i}, v{aq+2*i}, v{aq+2*i+1}")
        k(f"buffer_store_dwordx4 {vr(pq,4)}, v2, s[4:7], s11 offen")
        k(f"buffer_store_dwordx4 {vr(pq+4,4)}, v2, s[4:7], s11 offen offset:1024")
    end(k)
    kernels.append((k, BB + 2*BSZ, 112, 32))
    return 29 * BLK + (1024 if kind == "qkv" else 0)

def gen_gemmB(kind):
    k = Kern(f"{kind}_kernel")
    n = k.name
    prologue(k, 224)
    if kind == "oproj":
        KS, AIN, WB, RES, XOUT, ST = 32, OF, WO_F, XA, XB, STB
    else:
        KS, AIN, WB, RES, XOUT, ST = 112, HF, W2_F, XB, XA, STA
    final = kind == "ffn2b"
    KW = KS // 4
    RING = min(KW, 14)
    ACC = 16
    RESV = 80
    RED = 104
    k(f"""
    s_lshr_b32 s10, s2, 3
    s_mul_hi_u32 s9, s10, {(2**32 + 6)//7}
    s_mul_i32 s8, s9, 7
    s_sub_u32 s8, s10, s8
    s_and_b32 s10, s2, 7
    s_lshl_b32 s10, s10, 2
    s_add_u32 s9, s9, s10
    s_and_b32 s20, s3, 1
    s_lshr_b32 s21, s3, 1
    s_lshl_b32 s10, s9, 1
    s_add_u32 s10, s10, s20
    s_xor_b32 s22, s10, 1
    s_mul_i32 s23, s3, {KW*1024}
    s_add_u32 s23, s23, {AIN}
    s_mul_i32 s11, s10, {KS*1024}
    s_add_u32 s11, s11, s23
    s_mul_i32 s12, s22, {KS*1024}
    s_add_u32 s12, s12, s23
    s_mul_i32 s13, s8, {KS*2048}
    s_mul_i32 s23, s3, {KW*2048}
    s_add_u32 s13, s13, s23
    s_add_u32 s13, s13, {WB}
    s_lshl_b32 s23, s21, 10
    v_add_u32 v4, s23, v2
    v_xor_b32 v5, 0x400, v4
    s_lshl_b32 s24, s8, 1
    s_add_u32 s24, s24, s21
    s_mul_i32 s14, s10, {28*1024}
    s_lshl_b32 s23, s24, 11
    s_add_u32 s14, s14, s23
    s_add_u32 s15, s14, {RES}
    """)
    if final:
        k("s_load_dwordx2 s[28:29], s[0:1], 48")
    k("s_waitcnt lgkmcnt(0)")
    k(f"buffer_load_dwordx4 {vr(RESV,4)}, v2, s[4:7], s15 offen")
    k(f"buffer_load_dwordx4 {vr(RESV+4,4)}, v2, s[4:7], s15 offen offset:1024")
    def loads(ks):
        slot = (ks % RING) * 16
        out = []
        if ks > 0 and ks % 4 == 0:
            out += ["s_add_u32 s11, s11, 4096", "s_add_u32 s12, s12, 4096"]
        if ks > 0 and ks % 2 == 0:
            out += ["s_add_u32 s13, s13, 4096"]
        out.append(f"buffer_load_dwordx4 {ar(slot,4)}, v4, s[4:7], s13 offen offset:{(ks%2)*2048}")
        out.append(f"buffer_load_dwordx4 {ar(slot+8,4)}, v2, s[4:7], s11 offen offset:{(ks%4)*1024}")
        out.append(f"buffer_load_dwordx4 {ar(slot+12,4)}, v2, s[4:7], s12 offen offset:{(ks%4)*1024}")
        out.append(f"buffer_load_dwordx4 {ar(slot+4,4)}, v5, s[4:7], s13 offen offset:{(ks%2)*2048}")
        return out
    for ks in range(RING):
        for l in loads(ks): k(l)
    for i in range(1, 4):
        k(f"s_xor_b32 s25, s3, {i}\ns_mul_i32 s25, s25, 12288\ns_add_u32 s25, s25, {(i-1)*4096}\nv_add_u32 v{8+i}, s25, v2")
    k("s_mul_i32 s25, s3, 12288\nv_add_u32 v8, s25, v2")
    issued = RING
    stamp(k, 1)
    for ks in range(KW):
        slot = (ks % RING) * 16
        outstanding_after = (issued - ks - 1) * 4
        k(f"s_waitcnt vmcnt({outstanding_after})")
        if ks == 0: stamp(k, 2)
        for nu in range(2):
            for rho in range(2):
                i = 2*nu + rho
                acc = vr(ACC + 16*i, 16)
                cin = "0" if ks == 0 else acc
                k(f"v_mfma_f32_32x32x16_bf16 {acc}, {ar(slot+4*nu,4)}, {ar(slot+8+4*rho,4)}, {cin}")
        if issued < KW:
            for l in loads(issued): k(l)
            issued += 1
        if ks == 1:
            for i in range(8):
                k(f"v_lshlrev_b32 v{RESV+8+2*i}, 16, v{RESV+i}")
                k(f"v_and_b32 v{RESV+8+2*i+1}, 0xffff0000, v{RESV+i}")
    stamp(k, 3)
    k.nop(10)
    for i in range(1, 4):
        for q in range(4):
            k(f"ds_write_b128 v{8+i}, {vr(ACC+16*i+4*q,4)} offset:{q*1024}")
    for i in range(8):
        k(f"v_pk_add_f32 {vr(ACC+2*i,2)}, {vr(ACC+2*i,2)}, {vr(RESV+8+2*i,2)}")
    k("s_waitcnt lgkmcnt(0)\ns_barrier")
    for j in range(12):
        k(f"ds_read_b128 {vr(RED+4*j,4)}, v8 offset:{j*1024}")
    for s in range(3):
        k(f"s_waitcnt lgkmcnt({8-4*s})")
        for i in range(8):
            k(f"v_pk_add_f32 {vr(ACC+2*i,2)}, {vr(ACC+2*i,2)}, {vr(RED+16*s+2*i,2)}")
    P = RESV
    for i in range(8):
        k(f"v_cvt_pk_bf16_f32 v{P+i}, v{ACC+2*i}, v{ACC+2*i+1}")
    if final:
        k(f"""
        s_mov_b32 s30, {2048*448*2}
        s_mov_b32 s31, 0x20000
        v_and_b32 v4, 31, v1
        v_lshrrev_b32 v5, 5, v1
        v_mul_u32_u24 v4, 896, v4
        v_lshl_add_u32 v4, v5, 4, v4
        s_mul_i32 s14, s10, {32*896}
        s_lshl_b32 s23, s24, 6
        s_add_u32 s14, s14, s23
        v_permlane32_swap_b32 v{P}, v{P+2}
        v_permlane32_swap_b32 v{P+1}, v{P+3}
        v_permlane32_swap_b32 v{P+4}, v{P+6}
        v_permlane32_swap_b32 v{P+5}, v{P+7}
        buffer_store_dwordx4 {vr(P,4)}, v4, s[28:31], s14 offen
        buffer_store_dwordx4 {vr(P+4,4)}, v4, s[28:31], s14 offen offset:32
        """)
    else:
        k(f"""
        s_add_u32 s15, s14, {XOUT}
        buffer_store_dwordx4 {vr(P,4)}, v2, s[4:7], s15 offen
        buffer_store_dwordx4 {vr(P+4,4)}, v2, s[4:7], s15 offen offset:1024
        """)
        S1, S2 = RED, RED + 2
        k(f"v_pk_add_f32 {vr(S1,2)}, {vr(ACC,2)}, {vr(ACC+2,2)}")
        k(f"v_pk_mul_f32 {vr(S2,2)}, {vr(ACC,2)}, {vr(ACC,2)}")
        k(f"v_pk_fma_f32 {vr(S2,2)}, {vr(ACC+2,2)}, {vr(ACC+2,2)}, {vr(S2,2)}")
        for i in range(2, 8):
            k(f"v_pk_add_f32 {vr(S1,2)}, {vr(S1,2)}, {vr(ACC+2*i,2)}")
            k(f"v_pk_fma_f32 {vr(S2,2)}, {vr(ACC+2*i,2)}, {vr(ACC+2*i,2)}, {vr(S2,2)}")
        k(f"""
        v_add_f32 v{S1}, v{S1}, v{S1+1}
        v_add_f32 v{S2}, v{S2}, v{S2+1}
        v_and_b32 v4, 31, v1
        v_lshrrev_b32 v5, 5, v1
        v_permlane32_swap_b32 v{S1}, v{S2}
        v_lshlrev_b32 v4, 7, v4
        v_lshl_add_u32 v4, v5, 6, v4
        v_add_f32 v{S1}, v{S1}, v{S2}
        s_lshl_b32 s14, s10, 12
        s_lshl_b32 s23, s24, 2
        s_add_u32 s14, s14, s23
        s_add_u32 s14, s14, {ST}
        buffer_store_dword v{S1}, v4, s[4:7], s14 offen
        """)
    end(k)
    kernels.append((k, 152, RING*16, 32))
    return 49152

def gen_att():
    k = Kern("att_kernel")
    n = k.name
    prologue(k, 256)
    Q = 16
    O = 48
    S = 112
    P = 144
    RED = 160
    k(f"""
    s_and_b32 s8, s2, 15
    s_lshr_b32 s9, s2, 4
    s_lshl_b32 s10, s8, 6
    s_lshl_b32 s11, s3, 4
    s_add_u32 s11, s11, s10
    s_lshl_b32 s11, s11, 12
    s_add_u32 s11, s11, {KV}
    s_add_u32 s14, s11, {16*4096}
    s_mov_b32 s15, 0x20000
    s_lshl_b32 s16, s9, 2
    s_add_u32 s16, s16, s10
    s_lshl_b32 s16, s16, 11
    s_add_u32 s16, s16, {QF}
    s_lshl_b32 s17, s3, 11
    s_waitcnt lgkmcnt(0)
    s_mov_b32 s12, s4
    s_mov_b32 s13, s5
    """)
    def kvloads(slot):
        return [f"buffer_load_dwordx4 {ar(slot*16+4*j,4)}, v2, s[12:15], s11 offen offset:{j*1024}" for j in range(4)] + ["s_add_u32 s11, s11, 4096"]
    def qload(i):
        return [f"s_xor_b32 s18, s17, {i*2048}", "s_add_u32 s18, s18, s16",
                f"buffer_load_dwordx4 {vr(Q+8*i,4)}, v2, s[4:7], s18 offen",
                f"buffer_load_dwordx4 {vr(Q+8*i+4,4)}, v2, s[4:7], s18 offen offset:1024"]
    for l in qload(0): k(l)
    for l in kvloads(0): k(l)
    for i in range(1, 4):
        for l in qload(i): k(l)
    for l in kvloads(1): k(l)
    for l in kvloads(2): k(l)
    for r in range(64): k(f"v_mov_b32 v{O+r}, 0")
    for r in range(8): k(f"v_mov_b32 v{P+8+r}, 0")
    for r in range(8): k(f"v_accvgpr_write_b32 a{48+8+r}, 0")
    for i in range(1, 4):
        k(f"s_xor_b32 s25, s3, {i}\ns_mul_i32 s25, s25, 12288\ns_add_u32 s25, s25, {(i-1)*4096}\nv_add_u32 v{8+i}, s25, v2")
    k("s_mul_i32 s25, s3, 12288\nv_add_u32 v8, s25, v2")
    def smf(slot, i, buf, c):
        d = vr(S + 16*buf, 16)
        return f"v_mfma_f32_32x32x16_bf16 {d}, {ar(slot*16+4*c,4)}, {vr(Q+8*i+4*c,4)}, {'0' if c == 0 else d}"
    def pvmf(slot, i, buf, c):
        d = vr(O + 16*i, 16)
        return f"v_mfma_f32_32x32x16_bf16 {d}, {ar(slot*16+8+4*c,4)}, {vr(P+8*buf+4*c,4)}, {d}"
    stamp(k, 1)
    k("s_waitcnt vmcnt(8)")
    stamp(k, 2)
    k(smf(0, 0, 0, 0)); k(smf(0, 0, 0, 1))
    k("s_mov_b32 s19, 4")
    k.nop(10)
    k(".p2align 6")
    k.label(f"{n}_loop")
    for u in range(16):
        t, i = u // 4, u % 4
        buf = u % 2
        nt_, ni = ((u + 1) // 4) % 4, (u + 1) % 4
        pt, pi = ((u - 1) // 4) % 4, (u - 1) % 4
        sb = S + 16*buf
        pb = P + 8*buf
        ex = [f"v_exp_f32 v{sb+r}, v{sb+r}" for r in range(16)]
        cv = [f"v_cvt_pk_bf16_f32 v{pb+r}, v{sb+2*r}, v{sb+2*r+1}" for r in range(8)]
        seq = []
        if i == 3:
            seq.append("s_waitcnt vmcnt(8)")
        seq.append(smf(nt_, ni, 1-buf, 0))
        seq += [ex[0], ex[1], ex[2], ex[3], cv[0], ex[4]]
        seq.append(smf(nt_, ni, 1-buf, 1))
        seq += [ex[5], cv[1], ex[6], ex[7], cv[2], ex[8]]
        seq.append(pvmf(pt, pi, 1-buf, 0))
        seq += [ex[9], cv[3], ex[10], ex[11], cv[4], ex[12]]
        seq.append(pvmf(pt, pi, 1-buf, 1))
        if i == 0:
            ld = kvloads(pt)
            seq += [ex[13], ld[0], cv[5], ld[1], ex[14], ld[2], ex[15], ld[3], cv[6], ld[4], cv[7]]
        elif u == 15:
            seq += [ex[13], cv[5], ex[14], ex[15], cv[6], "s_sub_u32 s19, s19, 1", cv[7], "s_cmp_lg_u32 s19, 0"]
        else:
            seq += [ex[13], cv[5], ex[14], ex[15], cv[6], "s_nop 0", cv[7]]
        for l in seq: k(l)
    k(f"s_cbranch_scc1 {n}_loop")
    k("s_nop 0")
    k(pvmf(3, 3, 1, 0)); k(pvmf(3, 3, 1, 1))
    stamp(k, 3)
    for i in (1, 2):
        for q in range(4):
            k(f"ds_write_b128 v{8+i}, {vr(O+16*i+4*q,4)} offset:{q*1024}")
    k.nop(4)
    for q in range(4):
        k(f"ds_write_b128 v11, {vr(O+48+4*q,4)} offset:{q*1024}")
    k(f"""
    s_lshl_b32 s20, s9, 2
    s_add_u32 s20, s20, s3
    s_lshl_b32 s20, s20, 15
    s_lshl_b32 s21, s8, 11
    s_add_u32 s20, s20, s21
    s_add_u32 s20, s20, {OF}
    s_waitcnt lgkmcnt(0)
    s_barrier
    """)
    for j in range(12):
        k(f"ds_read_b128 {vr(RED+4*j,4)}, v8 offset:{j*1024}")
    for s in range(3):
        k(f"s_waitcnt lgkmcnt({8-4*s})")
        for i in range(8):
            k(f"v_pk_add_f32 {vr(O+2*i,2)}, {vr(O+2*i,2)}, {vr(RED+16*s+2*i,2)}")
    k(f"""
    v_mov_b32 v12, v{O+12}
    v_mov_b32 v13, v{O+12}
    s_mov_b32 s22, {hex(f2u(2.0**-40))}
    s_mov_b32 s23, {hex(f2u(2.0**40))}
    v_permlane32_swap_b32 v12, v13
    v_cmp_lt_f32 vcc, s22, v13
    v_cmp_gt_f32 s[24:25], s23, v13
    s_and_b64 vcc, vcc, s[24:25]
    s_cmp_eq_u64 vcc, exec
    s_cbranch_scc0 {n}_slow
    """)
    k.label(f"{n}_fin")
    k(f"v_rcp_f32 v12, v13\ns_nop 0")
    for i in range(8):
        k(f"v_pk_mul_f32 {vr(O+2*i,2)}, {vr(O+2*i,2)}, {vr(12,2)} op_sel_hi:[1,0]")
    for i in range(8):
        k(f"v_cvt_pk_bf16_f32 v{P+i}, v{O+2*i}, v{O+2*i+1}")
    k(f"""
    buffer_store_dwordx4 {vr(P,4)}, v2, s[4:7], s20 offen
    buffer_store_dwordx4 {vr(P+4,4)}, v2, s[4:7], s20 offen offset:1024
    """)
    stamp_flush(k)
    k("s_endpgm")
    k.label(f"{n}_slow")
    k(f"""
    s_waitcnt vmcnt(0)
    s_lshl_b32 s11, s10, 12
    s_add_u32 s11, s11, {KV}
    s_mov_b32 s19, 64
    v_mov_b32 v14, 0xff800000
    """)
    k.label(f"{n}_slow1")
    k(f"""
    buffer_load_dwordx4 a[0:3], v2, s[4:7], s11 offen
    buffer_load_dwordx4 a[4:7], v2, s[4:7], s11 offen offset:1024
    s_add_u32 s11, s11, 4096
    s_waitcnt vmcnt(0)
    {smf(0,0,0,0)}
    {smf(0,0,0,1)}
    """)
    k.nop(12)
    for r in range(8):
        k(f"v_max3_f32 v14, v{S+2*r}, v{S+2*r+1}, v14")
    k(f"""
    s_sub_u32 s19, s19, 1
    s_cmp_lg_u32 s19, 0
    s_cbranch_scc1 {n}_slow1
    v_mov_b32 v15, v14
    s_nop 1
    v_permlane32_swap_b32 v14, v15
    v_max_f32 v14, v14, v15
    s_lshl_b32 s11, s10, 12
    s_add_u32 s11, s11, {KV}
    s_mov_b32 s19, 64
    """)
    for r in range(16): k(f"v_mov_b32 v{O+r}, 0")
    k.label(f"{n}_slow2")
    for j in range(4):
        k(f"buffer_load_dwordx4 {ar(4*j,4)}, v2, s[4:7], s11 offen offset:{j*1024}")
    k(f"""
    s_add_u32 s11, s11, 4096
    s_waitcnt vmcnt(0)
    {smf(0,0,0,0)}
    {smf(0,0,0,1)}
    """)
    k.nop(12)
    for r in range(16): k(f"v_sub_f32 v{S+r}, v{S+r}, v14")
    for r in range(16): k(f"v_exp_f32 v{S+r}, v{S+r}")
    k("s_nop 0")
    for r in range(8): k(f"v_cvt_pk_bf16_f32 v{P+r}, v{S+2*r}, v{S+2*r+1}")
    k("s_nop 1")
    k(pvmf(0, 0, 0, 0)); k(pvmf(0, 0, 0, 1))
    k(f"""
    s_sub_u32 s19, s19, 1
    s_cmp_lg_u32 s19, 0
    s_cbranch_scc1 {n}_slow2
    """)
    k.nop(12)
    k(f"""
    v_mov_b32 v12, v{O+12}
    v_mov_b32 v13, v{O+12}
    s_nop 1
    v_permlane32_swap_b32 v12, v13
    s_branch {n}_fin
    """)
    k.label(f"{k.name}_end")
    k("s_endpgm")
    kernels.append((k, 208, 64, 32))
    return 49152

def build(path, extra_launch=0):
    gen_prep()
    l_qkv = gen_gemmA("qkv")
    l_att = gen_att()
    l_op = gen_gemmB("oproj")
    l_f1 = gen_gemmA("ffn1")
    l_f2 = gen_gemmB("ffn2a")
    l_f2b = gen_gemmB("ffn2b")
    launches = [("prep_kernel", 238, 33792)]
    for layer in range(2):
        launches += [("qkv_kernel", 256, l_qkv), ("att_kernel", 256, l_att), ("oproj_kernel", 224, l_op),
                     ("ffn1_kernel", 224, l_f1), ("ffn2a_kernel" if layer == 0 else "ffn2b_kernel", 224, l_f2)]
    hdr = open("cdna_kernels/%s.s.ref" % NAME).read().split("; Override")[0]
    out = hdr
    for nm, g, lds in launches:
        out += f"; @launch kernel={nm} grid=({g},1,1) block=(256,1,1) lds={lds}\n"
    out += '.amdgcn_target "amdgcn-amd-amdhsa--gfx950"\n.text\n'
    nerr = 0
    for k, v, a, s in kernels:
        for e in check_kernel(k):
            print("HAZARD", e); nerr += 1
        out += f".globl {k.name}\n.p2align 8\n.type {k.name},@function\n{k.name}:\n" + k.text() + "\n"
    out += '.section .rodata,"a"\n'
    for k, v, a, s in kernels:
        acc = (v + 3) // 4 * 4
        out += f""".p2align 6
.amdhsa_kernel {k.name}
  .amdhsa_next_free_vgpr {acc + a if a else v}
  .amdhsa_next_free_sgpr {64 if STAMP else s}
  .amdhsa_accum_offset {acc}
  .amdhsa_group_segment_fixed_size 0
  .amdhsa_kernarg_size 72
  .amdhsa_user_sgpr_count 2
  .amdhsa_user_sgpr_kernarg_segment_ptr 1
  .amdhsa_system_sgpr_workgroup_id_x 1
.end_amdhsa_kernel
"""
    open(path, "w").write(out)
    print("wrote", path, len(out), "bytes; hazards:", nerr)

if __name__ == "__main__":
    build(sys.argv[1] if len(sys.argv) > 1 else "cdna_kernels/%s.s" % NAME)
```

```python
import sys, math, os, struct
from asmlib import *

NAME = "interleave_layers__mha_block__dense_activation_relu__prompt"

WQKV_F = 0x000000
W1_F   = 0x160000
W2_F   = 0x300000
WO_F   = 0x490000
CNT    = 0x500000
ACT    = 0x600000
LSTR   = 0x1100000
XA     = ACT + 0x000000
XB     = ACT + 0x1C0000
STA    = ACT + 0x380000
STB    = ACT + 0x3C0000
KV     = ACT + 0x400000
OF     = ACT + 0x800000
HF     = ACT + 0xA00000
TS     = ACT + 2 * LSTR
WS_USED = TS + 0x100000

QSCALE = (28 ** -0.5) * math.log2(math.e)
def f2u(x): return struct.unpack("<I", struct.pack("<f", x))[0]
STAMP = os.environ.get("STAMP", "0") == "1"
SC = "sc1"

kernels = []

import gen_v1 as V1

def gen_prep():
    for nm in ("WQKV_F", "W1_F", "W2_F", "WO_F", "XA", "STA", "WS_USED"):
        setattr(V1, nm, globals()[nm])
    V1.STAMP = False
    V1.kernels.clear()
    V1.gen_prep()
    k, v, a, s = V1.kernels[0]
    i = k.lines.index("s_cmp_ge_u32 s2, 238")
    k.lines[i] = "s_cmp_ge_u32 s2, 248"
    j = k.lines.index("s_cmp_ge_u32 s2, 174")
    k.lines[j:j] = ["s_cmp_ge_u32 s2, 238", "s_cbranch_scc1 prep_kernel_z"]
    e = k.lines.index("prep_kernel_end:")
    k.lines[e:e] = ["s_endpgm", "prep_kernel_z:", "s_sub_u32 s24, s2, 238", "s_lshl_b32 s24, s24, 12", f"s_add_u32 s24, s24, {CNT}",
                    "v_lshlrev_b32 v4, 4, v0", "v_mov_b32 v8, 0", "v_mov_b32 v9, 0", "v_mov_b32 v10, 0", "v_mov_b32 v11, 0",
                    "s_waitcnt lgkmcnt(0)", "buffer_store_dwordx4 v[8:11], v4, s[4:7], s24 offen"]
    kernels.append((k, v, a, s))

class VM:
    def __init__(self, k): self.k = k; self.n = 0
    def issue(self, line):
        self.k(line); self.n += 1; return self.n
    def cnt(self, tok): return self.n - tok
    def wait(self, tok, extra=""):
        c = self.cnt(tok)
        assert c <= 63, c
        self.k(f"s_waitcnt vmcnt({c}) {extra}".strip())

RED_LDS = 114688
def gen_mega():
    k = Kern("mega_kernel")
    n = k.name
    vm = VM(k)
    st = {"i": 0}
    def stamp(name=None):
        if STAMP:
            i = st["i"]; st["i"] += 1
            assert i < 28
            k(f"s_memrealtime s[{44+2*i}:{45+2*i}]")
            stamp_names.append(name)
    ACC, STV, BB, RSTD = 16, 80, 96, 12
    CSQ, CS1, MUF, RES = 208, 220, 236, 240
    k(f"""
    s_cmp_ge_u32 s2, 256
    s_cbranch_scc1 {n}_end
    s_load_dwordx2 s[4:5], s[0:1], 64
    s_load_dwordx2 s[36:37], s[0:1], 48
    v_lshrrev_b32 v3, 6, v0
    v_and_b32 v1, 63, v0
    s_mov_b32 s6, {WS_USED}
    v_readfirstlane_b32 s3, v3
    s_mov_b32 s7, 0x20000
    v_lshlrev_b32 v2, 4, v1
    s_lshr_b32 s9, s2, 3
    s_lshr_b32 s8, s9, 4
    s_and_b32 s9, s9, 15
    s_and_b32 s10, s2, 7
    s_lshl_b32 s10, s10, 1
    s_add_u32 s8, s8, s10
    s_lshl_b32 s10, s8, 2
    s_add_u32 s10, s10, s3
    s_min_u32 s34, s9, 13
    s_cmp_ge_u32 s34, 7
    s_cselect_b32 s11, 1, 0
    s_mul_i32 s33, s11, 7
    s_sub_u32 s33, s34, s33
    s_lshl_b32 s28, s8, 1
    s_add_u32 s28, s28, s11
    s_lshl_b32 s28, s28, 1
    s_and_b32 s11, s3, 1
    s_add_u32 s28, s28, s11
    s_lshr_b32 s11, s3, 1
    s_lshl_b32 s29, s33, 1
    s_add_u32 s29, s29, s11
    s_lshl_b32 s11, s11, 10
    v_add_u32 v6, s11, v2
    v_xor_b32 v7, 0x400, v6
    v_add_u32 v3, 0x10000, v2
    v_and_b32 v4, 31, v1
    v_lshrrev_b32 v5, 5, v1
    v_lshlrev_b32 v4, 7, v4
    v_lshl_add_u32 v4, v5, 6, v4
    s_mov_b32 s30, 0
    s_mov_b32 s31, 0
    s_mov_b32 s32, {CNT}
    s_mov_b32 s38, {2048*448*2}
    s_mov_b32 s39, 0x20000
    s_mov_b32 s20, -1
    s_mov_b32 s21, 0
    s_mov_b32 s22, 0x10000000
    s_mov_b32 s23, 0x10000000
    """)
    for i in range(1, 4):
        k(f"s_xor_b32 s25, s3, {i}\ns_mul_i32 s25, s25, 12288\ns_add_u32 s25, s25, {RED_LDS + (i-1)*4096}\nv_add_u32 v{8+i}, s25, v2")
    k(f"s_mul_i32 s25, s3, 12288\ns_add_u32 s25, s25, {RED_LDS}\nv_add_u32 v8, s25, v2")
    k("s_waitcnt lgkmcnt(0)")
    stamp("start")

    def qkv_w_dma_setup():
        k(f"""
        s_mul_i32 s41, s3, {21*1024}
        s_mul_i32 s40, s9, {29*3072}
        s_add_u32 s40, s40, s41
        s_add_u32 s40, s40, {WQKV_F}
        """)
    def dma_group(cnt):
        k("s_mov_b32 m0, s41")
        k(f"s_add_u32 s41, s41, {cnt*1024}")
        for i in range(cnt):
            vm.issue(f"buffer_load_dwordx4 v2, s[4:7], s40 offen offset:{i*1024} lds")
        k(f"s_add_u32 s40, s40, {cnt*1024}")
    qkv_w_dma_setup()
    for g_ in range(7): dma_group(3)
    k(f"""
    s_mul_i32 s11, s9, {29*3072}
    s_add_u32 s11, s11, {WQKV_F + 28*3072}
    s_mul_i32 s12, s34, {29*4096}
    s_add_u32 s12, s12, {W1_F + 28*4096}
    s_mul_i32 s13, s28, {28*1024}
    s_lshl_b32 s14, s29, 11
    s_add_u32 s13, s13, s14
    s_add_u32 s13, s13, {XA}
    """)
    for t in range(3): vm.issue(f"buffer_load_dwordx4 {vr(CSQ+4*t,4)}, v2, s[4:7], s11 offen offset:{t*1024}")
    for t in range(4): vm.issue(f"buffer_load_dwordx4 {vr(CS1+4*t,4)}, v2, s[4:7], s12 offen offset:{t*1024}")
    vm.issue(f"buffer_load_dwordx4 v[16:19], v2, s[4:7], s13 offen")
    vm.issue(f"buffer_load_dwordx4 v[20:23], v2, s[4:7], s13 offen offset:1024")
    k("s_waitcnt vmcnt(0)")
    for i in range(8):
        k(f"v_lshlrev_b32 v{RES+2*i}, 16, v{16+i}")
        k(f"v_and_b32 v{RES+2*i+1}, 0xffff0000, v{16+i}")
    k("s_barrier")
    k(f"s_branch {n}_qkv")

    def signal(phase, idx_s):
        lab = f"{n}_sg{phase}"
        k(f"""
        s_barrier
        s_cmp_lg_u32 s3, 1
        s_cbranch_scc1 {lab}
        s_lshl_b32 s24, s{idx_s}, 8
        s_add_u32 s24, s24, s32
        s_add_u32 s24, s24, {phase*4096}
        v_mov_b32 v14, 0
        v_mov_b32 v15, 1
        s_mov_b64 exec, 1
        buffer_atomic_add v15, v14, s[4:7], s24 offen sc1
        s_mov_b64 exec, -1
        """)
        k.label(lab)
    def poll(phase, idx_s, target, tag, base_adj=0):
        lab = f"{n}_pl{tag}"
        k(f"""
        s_cmp_lg_u32 s3, 0
        s_cbranch_scc1 {lab}_d
        s_lshl_b32 s24, s{idx_s}, 8
        s_add_u32 s24, s24, s32
        s_add_u32 s24, s24, {phase*4096 + base_adj}
        v_mov_b32 v14, 0
        s_mov_b32 s25, 200000
        s_mov_b64 exec, 1
        """)
        k.label(lab)
        k(f"""
        buffer_load_dword v15, v14, s[4:7], s24 offen sc0 sc1
        s_sub_u32 s25, s25, 1
        s_cmp_eq_u32 s25, 0
        s_cbranch_scc1 {lab}_x
        s_waitcnt vmcnt(0)
        v_cmp_gt_u32 vcc, {target}, v15
        s_cbranch_vccnz {lab}
        """)
        k.label(lab + "_x")
        k("s_mov_b64 exec, -1")
        k.label(lab + "_d")
        k("s_barrier")

    def stats_calc():
        return f"""
        v_pk_add_f32 {vr(STV,2)}, {vr(STV,2)}, {vr(STV+2,2)}
        v_pk_add_f32 {vr(STV+4,2)}, {vr(STV+4,2)}, {vr(STV+6,2)}
        v_pk_add_f32 {vr(STV+8,2)}, {vr(STV+8,2)}, {vr(STV+10,2)}
        v_pk_add_f32 {vr(STV,2)}, {vr(STV,2)}, {vr(STV+4,2)}
        v_pk_add_f32 {vr(STV+8,2)}, {vr(STV+8,2)}, {vr(STV+12,2)}
        v_pk_add_f32 {vr(STV,2)}, {vr(STV,2)}, {vr(STV+8,2)}
        v_add_f32 v{STV}, v{STV}, v{STV+1}
        v_mul_f32 v{STV}, {hex(f2u(1.0/448))}, v{STV}
        v_mov_b32 v{STV+1}, v{STV}
        s_nop 1
        v_permlane32_swap_b32 v{STV}, v{STV+1}
        v_fma_f32 v{STV+2}, -v{STV}, v{STV}, v{STV+1}
        v_max_f32 v{STV+2}, 0, v{STV+2}
        v_add_f32 v{STV+2}, {hex(f2u(1e-5))}, v{STV+2}
        v_rsq_f32 v{RSTD}, v{STV+2}
        v_sub_f32 v{STV}, 0, v{STV}
        v_cvt_pk_bf16_f32 v{STV+3}, v{STV}, v{STV}
        v_and_b32 v{STV+4}, 0xffff0000, v{STV+3}
        v_sub_f32 v{STV+4}, v{STV}, v{STV+4}
        v_cvt_pk_bf16_f32 v{STV+4}, v{STV+4}, v{STV+4}
        v_cndmask_b32 v{MUF}, 0, v{STV+3}, s[20:21]
        v_cndmask_b32 v{MUF+1}, 0, v{STV+4}, s[20:21]
        v_mov_b32 v{MUF+2}, 0
        v_mov_b32 v{MUF+3}, 0
        """.strip().split("\n")

    def gemmA(kind, side):
        NT = 3 if kind == "qkv" else 4
        XIN, ST, CS = (XA, STA, CSQ) if kind == "qkv" else (XB, STB, CS1)
        RING = 4
        k(f"""
        s_mul_i32 s11, s10, {28*1024}
        s_add_u32 s11, s11, s31
        s_add_u32 s11, s11, {XIN}
        s_lshl_b32 s14, s10, 12
        s_add_u32 s14, s14, s31
        s_add_u32 s14, s14, {ST}
        """)
        xt = {}
        def xload(ks):
            if ks and ks % 4 == 0: k("s_add_u32 s11, s11, 4096")
            xt[ks] = vm.issue(f"buffer_load_dwordx4 {ar(4*ks,4)}, v2, s[4:7], s11 offen offset:{(ks%4)*1024} {SC}")
        def reads(ks):
            for t in range(NT):
                off = (ks * NT + t) * 1024
                dst = BB + ((ks % RING) * NT + t) * 4
                k(f"ds_read_b128 {vr(dst,4)}, v2 offset:{off}" if off < 65536 else f"ds_read_b128 {vr(dst,4)}, v3 offset:{off-65536}")
        xload(0); xload(1)
        vm.issue(f"buffer_load_dwordx4 {vr(STV,4)}, v4, s[4:7], s14 offen {SC}")
        vm.issue(f"buffer_load_dwordx4 {vr(STV+4,4)}, v4, s[4:7], s14 offen offset:16 {SC}")
        vm.issue(f"buffer_load_dwordx4 {vr(STV+8,4)}, v4, s[4:7], s14 offen offset:32 {SC}")
        stt = vm.issue(f"buffer_load_dwordx2 {vr(STV+12,2)}, v4, s[4:7], s14 offen offset:48 {SC}")
        UP = 12
        for ks in range(2, UP): xload(ks)
        reads(0); reads(1)
        sc = stats_calc()
        for ks in range(28):
            if ks + UP < 28: xload(ks + UP)
            if ks + 2 < 28: reads(ks + 2)
            lg = NT * min(2, 27 - ks)
            vm.wait(xt[ks], f"lgkmcnt({lg})")
            if ks == 0: stamp(kind + " first x")
            for t in range(NT):
                bf = vr(BB + ((ks % RING) * NT + t) * 4, 4)
                acc = vr(ACC + 16*t, 16)
                cin = "0" if ks == 0 else acc
                if kind == "qkv" and t == 2:
                    k(f"v_mfma_f32_32x32x16_bf16 {acc}, {ar(4*ks,4)}, {bf}, {cin}")
                else:
                    k(f"v_mfma_f32_32x32x16_bf16 {acc}, {bf}, {ar(4*ks,4)}, {cin}")
            if ks in (3, 4, 5):
                for l in sc[(ks-3)*8:(ks-2)*8]: k(l)
            if kind == "qkv" and ks == 6:
                k(f"""
                s_lshl_b32 s17, s3, 8
                s_add_u32 s17, s17, {RED_LDS + 8192}
                v_lshl_add_u32 v14, v1, 2, s17
                ds_write_b32 v14, v{RSTD}
                v_lshl_add_u32 v14, v5, 4, s17
                s_waitcnt lgkmcnt(0)
                ds_read_b128 {vr(STV,4)}, v14
                ds_read_b128 {vr(STV+4,4)}, v14 offset:32
                ds_read_b128 {vr(STV+8,4)}, v14 offset:64
                ds_read_b128 {vr(STV+12,4)}, v14 offset:96
                """)
            for f in side(ks): f()
        for t in range(NT):
            acc = vr(ACC + 16*t, 16)
            if kind == "qkv" and t == 2:
                k(f"v_mfma_f32_32x32x16_bf16 {acc}, {vr(MUF,4)}, {vr(CS+4*t,4)}, {acc}")
            else:
                k(f"v_mfma_f32_32x32x16_bf16 {acc}, {vr(CS+4*t,4)}, {vr(MUF,4)}, {acc}")
        stamp(kind + " mfma done")

    k.label(f"{n}_qkv")
    OPW = 112
    def opw_setup():
        k(f"""
        s_mul_i32 s13, s33, {32*2048}
        s_lshl_b32 s12, s3, 14
        s_add_u32 s13, s13, s12
        s_add_u32 s13, s13, {WO_F}
        """)
    def opw_load(kk):
        def f():
            if kk and kk % 2 == 0: k("s_add_u32 s13, s13, 4096")
            vm.issue(f"buffer_load_dwordx4 {ar(OPW+8*kk,4)}, v6, s[4:7], s13 offen offset:{(kk%2)*2048}")
            vm.issue(f"buffer_load_dwordx4 {ar(OPW+8*kk+4,4)}, v7, s[4:7], s13 offen offset:{(kk%2)*2048}")
        return f
    def qkv_side(ks):
        if ks == 17: return [opw_setup]
        if 18 <= ks < 26: return [opw_load(ks - 18)]
        return []
    gemmA("qkv", qkv_side)
    PK = BB
    k(f"""
    s_lshl_b32 s12, s9, 6
    s_add_u32 s12, s12, s10
    s_lshl_b32 s12, s12, 12
    s_add_u32 s12, s12, s31
    s_add_u32 s12, s12, {KV}
    v_mul_f32 v14, {hex(f2u(QSCALE))}, v{RSTD}
    v_mov_b32 v15, 0x3f803f80
    s_lshl_b32 s17, s3, 11
    s_add_u32 s17, s17, {RED_LDS}
    v_add_u32 v13, s17, v2
    """)
    k.nop(2)
    aq, ak, av = ACC, ACC + 16, ACC + 32
    pk_, pq, pv = PK, PK + 8, PK + 16
    for i in range(8):
        k(f"v_pk_mul_f32 {vr(ak+2*i,2)}, {vr(ak+2*i,2)}, {vr(RSTD,2)} op_sel_hi:[1,0]")
    for i in range(8):
        k(f"v_cvt_pk_bf16_f32 v{pk_+i}, v{ak+2*i}, v{ak+2*i+1}")
    k(f"v_cndmask_b32 v{pk_+6}, v15, v{pk_+6}, s[20:21]")
    k(f"v_cndmask_b32 v{pk_+7}, v15, v{pk_+7}, s[20:21]")
    vm.issue(f"buffer_store_dwordx4 {vr(pk_,4)}, v2, s[4:7], s12 offen {SC}")
    vm.issue(f"buffer_store_dwordx4 {vr(pk_+4,4)}, v2, s[4:7], s12 offen offset:1024 {SC}")
    for i in range(8):
        k(f"v_pk_mul_f32 {vr(av+2*i,2)}, {vr(av+2*i,2)}, {vr(STV+2*i,2)}")
    for i in range(8):
        k(f"v_cvt_pk_bf16_f32 v{pv+i}, v{av+2*i}, v{av+2*i+1}")
    for i in range(8):
        k(f"v_cndmask_b32 v{pv+i}, v{pv+i}, v15, s[22:23]")
    vm.issue(f"buffer_store_dwordx4 {vr(pv,4)}, v2, s[4:7], s12 offen offset:2048 {SC}")
    vm.issue(f"buffer_store_dwordx4 {vr(pv+4,4)}, v2, s[4:7], s12 offen offset:3072 {SC}")
    for i in range(8):
        k(f"v_pk_mul_f32 {vr(aq+2*i,2)}, {vr(aq+2*i,2)}, {vr(14,2)} op_sel_hi:[1,0]")
    k(f"v_pk_mul_f32 {vr(MUF,2)}, {vr(aq,2)}, {vr(ak,2)}")
    for i in range(1, 8):
        k(f"v_pk_fma_f32 {vr(MUF,2)}, {vr(aq+2*i,2)}, {vr(ak+2*i,2)}, {vr(MUF,2)}")
    k(f"""
    v_add_f32 v{MUF}, v{MUF}, v{MUF+1}
    v_mov_b32 v{MUF+1}, v{MUF}
    s_nop 1
    v_permlane32_swap_b32 v{MUF}, v{MUF+1}
    v_add_f32 v{MUF}, v{MUF}, v{MUF+1}
    v_sub_f32 v{MUF}, 0, v{MUF}
    v_cndmask_b32 v{aq+12}, v{MUF}, v{aq+12}, s[20:21]
    """)
    for i in range(8):
        k(f"v_cvt_pk_bf16_f32 v{pq+i}, v{aq+2*i}, v{aq+2*i+1}")
    k(f"ds_write_b128 v13, {vr(pq,4)}")
    k(f"ds_write_b128 v13, {vr(pq+4,4)} offset:1024")
    k("s_waitcnt vmcnt(0) lgkmcnt(0)")
    stamp("qkv drained")
    signal(0, 9)

    Q, O, S, P, RED = 16, 48, 112, 144, 160
    for i in range(4):
        k(f"v_xor_b32 v14, {i*2048}, v13" if i else "v_mov_b32 v14, v13")
        k(f"ds_read_b128 {vr(Q+8*i,4)}, v14")
        k(f"ds_read_b128 {vr(Q+8*i+4,4)}, v14 offset:1024")
    for r in range(64): k(f"v_mov_b32 v{O+r}, 0")
    for r in range(8): k(f"v_mov_b32 v{P+8+r}, 0")
    for r in range(8): k(f"v_accvgpr_write_b32 a{48+8+r}, 0")
    k(f"""
    s_lshl_b32 s26, s9, 6
    s_lshl_b32 s11, s3, 4
    s_add_u32 s11, s11, s26
    s_lshl_b32 s11, s11, 12
    s_add_u32 s11, s11, s31
    s_add_u32 s11, s11, {KV}
    s_add_u32 s18, s11, {16*4096}
    s_mov_b32 s19, 0x20000
    s_mov_b32 s16, s4
    s_mov_b32 s17, s5
    s_mul_i32 s41, s3, {28*1024}
    s_mul_i32 s40, s34, {29*4096}
    s_add_u32 s40, s40, s41
    s_add_u32 s40, s40, {W1_F}
    s_waitcnt lgkmcnt(0)
    """)
    poll(0, 9, 16, "kv")
    stamp("kv ready")
    def kvloads(slot):
        return [f"buffer_load_dwordx4 {ar(slot*16+4*j,4)}, v2, s[16:19], s11 offen offset:{j*1024} {SC}" for j in range(4)] + ["s_add_u32 s11, s11, 4096"]
    for s_ in range(3):
        for l in kvloads(s_): k(l)
    def smf(slot, i, buf, c):
        d = vr(S + 16*buf, 16)
        return f"v_mfma_f32_32x32x16_bf16 {d}, {ar(slot*16+4*c,4)}, {vr(Q+8*i+4*c,4)}, {'0' if c == 0 else d}"
    def pvmf(slot, i, buf, c):
        d = vr(O + 16*i, 16)
        return f"v_mfma_f32_32x32x16_bf16 {d}, {ar(slot*16+8+4*c,4)}, {vr(P+8*buf+4*c,4)}, {d}"
    k("s_waitcnt vmcnt(8)")
    stamp("att first kv")
    k(smf(0, 0, 0, 0)); k(smf(0, 0, 0, 1))
    k("s_mov_b32 s27, 4")
    k.nop(10)
    k(".p2align 6")
    k.label(f"{n}_loop")
    D = (3, 2, 2, 0)
    carry = None
    for u in range(16):
        t, i = u // 4, u % 4
        buf = u % 2
        nt_, ni = ((u + 1) // 4) % 4, (u + 1) % 4
        pt, pi = ((u - 1) // 4) % 4, (u - 1) % 4
        sb = S + 16*buf
        pb = P + 8*buf
        ex = [f"v_exp_f32 v{sb+r}, v{sb+r}" for r in range(16)]
        cv = [f"v_cvt_pk_bf16_f32 v{pb+r}, v{sb+2*r}, v{sb+2*r+1}" for r in range(8)]
        seq = []
        if i == 3:
            seq.append(f"s_waitcnt vmcnt({8 + D[t] + D[(t-1) % 4]})")
        seq.append(smf(nt_, ni, 1-buf, 0))
        seq += [ex[0], ex[1], ex[2], ex[3], cv[0], ex[4]]
        seq.append(smf(nt_, ni, 1-buf, 1))
        seq += [ex[5], cv[1], ex[6], ex[7], cv[2], ex[8]]
        seq.append(pvmf(pt, pi, 1-buf, 0))
        if i == 0 and D[t]:
            dm = [f"buffer_load_dwordx4 v2, s[4:7], s40 offen offset:{q*1024} lds" for q in range(D[t])] + [""] * (3 - D[t])
            seq += ["s_mov_b32 m0, s41", ex[9], dm[0], cv[3], dm[1], ex[10], dm[2], ex[11], f"s_add_u32 s40, s40, {D[t]*1024}", cv[4], f"s_add_u32 s41, s41, {D[t]*1024}", ex[12]]
        else:
            seq += [ex[9], cv[3], ex[10], ex[11], cv[4], ex[12]]
        seq.append(pvmf(pt, pi, 1-buf, 1))
        if i == 0:
            ld = kvloads(pt)
            seq += [ex[13], ld[0], ex[14], ld[1], cv[5], ld[2], ex[15], ld[3], cv[6], ld[4], cv[7]]
        elif u == 15:
            seq += [ex[13], ex[14], cv[5], ex[15], "s_sub_u32 s27, s27, 1", cv[6], "s_cmp_lg_u32 s27, 0", cv[7]]
        else:
            seq += [ex[13], ex[14], cv[5], ex[15], cv[6], cv[7]]
        for l in seq: k(l)
    k(f"s_cbranch_scc1 {n}_loop")
    k("s_nop 0")
    k(pvmf(3, 3, 1, 0)); k(pvmf(3, 3, 1, 1))
    stamp("att loop done")
    for i in (1, 2):
        for q in range(4):
            k(f"ds_write_b128 v{8+i}, {vr(O+16*i+4*q,4)} offset:{q*1024}")
    k.nop(4)
    for q in range(4):
        k(f"ds_write_b128 v11, {vr(O+48+4*q,4)} offset:{q*1024}")
    k(f"""
    s_lshl_b32 s12, s10, 15
    s_lshl_b32 s13, s9, 11
    s_add_u32 s12, s12, s13
    s_add_u32 s12, s12, s31
    s_add_u32 s12, s12, {OF}
    s_waitcnt lgkmcnt(0)
    s_barrier
    """)
    for j in range(12):
        k(f"ds_read_b128 {vr(RED+4*j,4)}, v8 offset:{j*1024}")
    for s_ in range(3):
        k(f"s_waitcnt lgkmcnt({8-4*s_})")
        for i in range(8):
            k(f"v_pk_add_f32 {vr(O+2*i,2)}, {vr(O+2*i,2)}, {vr(RED+16*s_+2*i,2)}")
    k(f"""
    v_mov_b32 v12, v{O+12}
    v_mov_b32 v13, v{O+12}
    s_mov_b32 s14, {hex(f2u(2.0**-40))}
    s_mov_b32 s15, {hex(f2u(2.0**40))}
    v_permlane32_swap_b32 v12, v13
    v_cmp_lt_f32 vcc, s14, v13
    v_cmp_gt_f32 s[24:25], s15, v13
    s_and_b64 vcc, vcc, s[24:25]
    s_cmp_eq_u64 vcc, exec
    s_cbranch_scc0 {n}_slow
    """)
    k.label(f"{n}_fin")
    k(f"v_rcp_f32 v12, v13\ns_nop 0")
    for i in range(8):
        k(f"v_pk_mul_f32 {vr(O+2*i,2)}, {vr(O+2*i,2)}, {vr(12,2)} op_sel_hi:[1,0]")
    for i in range(8):
        k(f"v_cvt_pk_bf16_f32 v{P+i}, v{O+2*i}, v{O+2*i+1}")
    k(f"""
    buffer_store_dwordx4 {vr(P,4)}, v2, s[4:7], s12 offen {SC}
    buffer_store_dwordx4 {vr(P+4,4)}, v2, s[4:7], s12 offen offset:1024 {SC}
    s_waitcnt vmcnt(0)
    """)
    stamp("att drained")
    signal(1, 8)
    k(f"""
    s_cmp_ge_u32 s9, 14
    s_cbranch_scc1 {n}_idle
    """)

    def gemmB_epilogue(kind):
        RD = 104
        k.nop(10)
        for i in range(1, 4):
            for q in range(4):
                k(f"ds_write_b128 v{8+i}, {vr(ACC+16*i+4*q,4)} offset:{q*1024}")
        for i in range(8):
            k(f"v_pk_add_f32 {vr(RES+2*i,2)}, {vr(RES+2*i,2)}, {vr(ACC+2*i,2)}")
        k("s_waitcnt lgkmcnt(0)\ns_barrier")
        for j in range(12):
            k(f"ds_read_b128 {vr(RD+4*j,4)}, v8 offset:{j*1024}")
        XOUT, ST = (XB, STB) if kind == "op" else (XA + LSTR, STA + LSTR)
        k(f"""
        s_mul_i32 s14, s28, {28*1024}
        s_lshl_b32 s15, s29, 11
        s_add_u32 s14, s14, s15
        s_add_u32 s14, s14, s31
        s_add_u32 s14, s14, {XOUT}
        s_lshl_b32 s15, s28, 12
        s_lshl_b32 s16, s29, 2
        s_add_u32 s15, s15, s16
        s_add_u32 s15, s15, s31
        s_add_u32 s15, s15, {ST}
        """)
        for s_ in range(3):
            k(f"s_waitcnt lgkmcnt({8-4*s_})")
            for i in range(8):
                k(f"v_pk_add_f32 {vr(RES+2*i,2)}, {vr(RES+2*i,2)}, {vr(RD+16*s_+2*i,2)}")
        PP = 80
        for i in range(8):
            k(f"v_cvt_pk_bf16_f32 v{PP+i}, v{RES+2*i}, v{RES+2*i+1}")
        if kind == "f2":
            k(f"s_cmp_eq_u32 s30, 1\ns_cbranch_scc1 {n}_final")
        vm.issue(f"buffer_store_dwordx4 {vr(PP,4)}, v2, s[4:7], s14 offen {SC}")
        vm.issue(f"buffer_store_dwordx4 {vr(PP+4,4)}, v2, s[4:7], s14 offen offset:1024 {SC}")
        S1, S2 = RD, RD + 2
        k(f"v_pk_add_f32 {vr(S1,2)}, {vr(RES,2)}, {vr(RES+2,2)}")
        k(f"v_pk_mul_f32 {vr(S2,2)}, {vr(RES,2)}, {vr(RES,2)}")
        k(f"v_pk_fma_f32 {vr(S2,2)}, {vr(RES+2,2)}, {vr(RES+2,2)}, {vr(S2,2)}")
        for i in range(2, 8):
            k(f"v_pk_add_f32 {vr(S1,2)}, {vr(S1,2)}, {vr(RES+2*i,2)}")
            k(f"v_pk_fma_f32 {vr(S2,2)}, {vr(RES+2*i,2)}, {vr(RES+2*i,2)}, {vr(S2,2)}")
        k(f"""
        v_add_f32 v{S1}, v{S1}, v{S1+1}
        v_add_f32 v{S2}, v{S2}, v{S2+1}
        s_nop 1
        v_permlane32_swap_b32 v{S1}, v{S2}
        v_add_f32 v{S1}, v{S1}, v{S2}
        """)
        vm.issue(f"buffer_store_dword v{S1}, v4, s[4:7], s15 offen {SC}")
        k("s_waitcnt vmcnt(0)")

    def a_setup(AIN, KS):
        KW = KS // 4
        k(f"""
        s_mul_i32 s13, s3, {KW*1024}
        s_add_u32 s13, s13, s31
        s_add_u32 s13, s13, {AIN}
        s_mul_i32 s11, s28, {KS*1024}
        s_add_u32 s11, s11, s13
        s_xor_b32 s12, s28, 1
        s_mul_i32 s12, s12, {KS*1024}
        s_add_u32 s12, s12, s13
        """)
    a_setup(OF, 32)
    poll(1, 8, 16, "o")
    stamp("o ready")
    at = {}
    for ks in range(8):
        if ks == 4: k("s_add_u32 s11, s11, 4096\ns_add_u32 s12, s12, 4096")
        vm.issue(f"buffer_load_dwordx4 {ar(8*ks,4)}, v2, s[4:7], s11 offen offset:{(ks%4)*1024} {SC}")
        at[ks] = vm.issue(f"buffer_load_dwordx4 {ar(8*ks+4,4)}, v2, s[4:7], s12 offen offset:{(ks%4)*1024} {SC}")
    for ks in range(8):
        vm.wait(at[ks])
        for nu in range(2):
            for rho in range(2):
                acc = vr(ACC + 16*(2*nu+rho), 16)
                k(f"v_mfma_f32_32x32x16_bf16 {acc}, {ar(OPW+8*ks+4*nu,4)}, {ar(8*ks+4*rho,4)}, {'0' if ks == 0 else acc}")
    stamp("op mfma done")
    gemmB_epilogue("op")
    stamp("op drained")
    signal(2, 8)

    poll(2, 8, 14, "x1")
    stamp("x1 ready")
    def w2reg(kk, nu):
        idx = 2*kk + nu
        return 112 + 4*idx if idx < 36 else 4*(idx - 36)
    def w2_setup():
        k(f"""
        s_mul_i32 s13, s33, {112*2048}
        s_mul_i32 s12, s3, {28*2048}
        s_add_u32 s13, s13, s12
        s_add_u32 s13, s13, {W2_F}
        """)
    def w2_load(kk):
        def f():
            if kk and kk % 2 == 0: k("s_add_u32 s13, s13, 4096")
            vm.issue(f"buffer_load_dwordx4 {ar(w2reg(kk,0),4)}, v6, s[4:7], s13 offen offset:{(kk%2)*2048}")
            vm.issue(f"buffer_load_dwordx4 {ar(w2reg(kk,1),4)}, v7, s[4:7], s13 offen offset:{(kk%2)*2048}")
        return f
    def f1_side(ks):
        if ks == 15: return [w2_setup]
        if 16 <= ks < 28: return [w2_load(ks - 16)]
        return []
    gemmA("ffn1", f1_side)
    k(f"""
    s_mul_i32 s11, s10, {112*1024}
    s_lshl_b32 s12, s34, 13
    s_add_u32 s11, s11, s12
    s_add_u32 s11, s11, s31
    s_add_u32 s11, s11, {HF}
    s_add_u32 s12, s11, 4096
    """)
    k.nop(6)
    for t in range(4):
        a = ACC + 16*t
        p = BB + 8*t
        for i in range(8):
            k(f"v_pk_mul_f32 {vr(a+2*i,2)}, {vr(a+2*i,2)}, {vr(RSTD,2)} op_sel_hi:[1,0]")
        for i in range(8):
            k(f"v_cvt_pk_bf16_f32 v{p+i}, v{a+2*i}, v{a+2*i+1}")
        for i in range(8):
            k(f"v_pk_max_i16 v{p+i}, v{p+i}, 0")
        sb = 11 if t < 2 else 12
        vm.issue(f"buffer_store_dwordx4 {vr(p,4)}, v2, s[4:7], s{sb} offen offset:{(t%2)*2048} {SC}")
        hst = vm.issue(f"buffer_store_dwordx4 {vr(p+4,4)}, v2, s[4:7], s{sb} offen offset:{(t%2)*2048+1024} {SC}")
    for kk in range(12, 28): w2_load(kk)()
    vm.wait(hst)
    stamp("f1 drained")
    signal(3, 8)

    a_setup(HF, 112)
    qkv_w_dma_setup()
    poll(3, 8, 14, "h")
    stamp("h ready")
    AR = 96
    RING = 14
    at = {}
    def aload(ks):
        if ks and ks % 4 == 0: k("s_add_u32 s11, s11, 4096\ns_add_u32 s12, s12, 4096")
        b = AR + 8*(ks % RING)
        vm.issue(f"buffer_load_dwordx4 {vr(b,4)}, v2, s[4:7], s11 offen offset:{(ks%4)*1024} {SC}")
        at[ks] = vm.issue(f"buffer_load_dwordx4 {vr(b+4,4)}, v2, s[4:7], s12 offen offset:{(ks%4)*1024} {SC}")
    UP = 8
    for ks in range(UP): aload(ks)
    for ks in range(28):
        vm.wait(at[ks])
        b = AR + 8*(ks % RING)
        for nu in range(2):
            for rho in range(2):
                acc = vr(ACC + 16*(2*nu+rho), 16)
                k(f"v_mfma_f32_32x32x16_bf16 {acc}, {ar(w2reg(ks,nu),4)}, {vr(b+4*rho,4)}, {'0' if ks == 0 else acc}")
        if ks + UP < 28: aload(ks + UP)
        if 20 <= ks < 27: dma_group(3)
    stamp("f2 mfma done")
    gemmB_epilogue("f2")
    stamp("f2 drained")
    signal(4, 8)
    k.label(f"{n}_next")
    def flush():
        if not STAMP: return
        k(f"""
        s_waitcnt lgkmcnt(0)
        s_lshl_b32 s24, s2, 2
        s_add_u32 s24, s24, s3
        s_lshl_b32 s24, s24, 1
        s_add_u32 s24, s24, s30
        s_lshl_b32 s24, s24, 7
        s_add_u32 s24, s24, {TS}
        v_mov_b32 v14, 0
        """)
        for i in range(st["i"]):
            k(f"v_mov_b32 v15, s{44+2*i}\nbuffer_store_dword v15, v14, s[4:7], s24 offen offset:{4*i}")
    flush()
    poll(4, 8, 14, "x2")
    if STAMP: k("s_memrealtime s[44:45]")
    k(f"""
    s_mov_b32 s30, 1
    s_mov_b32 s31, {LSTR}
    s_add_u32 s32, s32, {5*4096}
    s_branch {n}_qkv
    """)
    k.label(f"{n}_idle")
    k(f"s_cmp_eq_u32 s30, 1\ns_cbranch_scc1 {n}_end")
    qkv_w_dma_setup()
    for g_ in range(7): dma_group(3)
    k(f"s_waitcnt vmcnt(0)\ns_branch {n}_next")
    k.label(f"{n}_final")
    PP = 80
    k(f"""
    v_and_b32 v14, 31, v1
    v_mul_u32_u24 v14, 896, v14
    v_lshl_add_u32 v14, v5, 4, v14
    s_mul_i32 s14, s28, {32*896}
    s_lshl_b32 s15, s29, 6
    s_add_u32 s14, s14, s15
    v_permlane32_swap_b32 v{PP}, v{PP+2}
    v_permlane32_swap_b32 v{PP+1}, v{PP+3}
    v_permlane32_swap_b32 v{PP+4}, v{PP+6}
    v_permlane32_swap_b32 v{PP+5}, v{PP+7}
    buffer_store_dwordx4 {vr(PP,4)}, v14, s[36:39], s14 offen
    buffer_store_dwordx4 {vr(PP+4,4)}, v14, s[36:39], s14 offen offset:32
    """)
    if STAMP:
        k(f"s_waitcnt vmcnt(0)\ns_memrealtime s[{44+2*(st['i']-1)}:{45+2*(st['i']-1)}]")
    flush()
    k("s_endpgm")
    k.label(f"{n}_slow")
    k(f"""
    s_waitcnt vmcnt(0)
    s_lshl_b32 s11, s26, 12
    s_add_u32 s11, s11, s31
    s_add_u32 s11, s11, {KV}
    s_mov_b32 s13, s11
    s_mov_b32 s27, 64
    v_mov_b32 v14, 0xff800000
    """)
    k.label(f"{n}_slow1")
    k(f"""
    buffer_load_dwordx4 a[0:3], v2, s[4:7], s11 offen {SC}
    buffer_load_dwordx4 a[4:7], v2, s[4:7], s11 offen offset:1024 {SC}
    s_add_u32 s11, s11, 4096
    s_waitcnt vmcnt(0)
    {smf(0,0,0,0)}
    {smf(0,0,0,1)}
    """)
    k.nop(12)
    for r in range(8):
        k(f"v_max3_f32 v14, v{S+2*r}, v{S+2*r+1}, v14")
    k(f"""
    s_sub_u32 s27, s27, 1
    s_cmp_lg_u32 s27, 0
    s_cbranch_scc1 {n}_slow1
    v_mov_b32 v15, v14
    s_nop 1
    v_permlane32_swap_b32 v14, v15
    v_max_f32 v14, v14, v15
    s_mov_b32 s11, s13
    s_mov_b32 s27, 64
    """)
    for r in range(16): k(f"v_mov_b32 v{O+r}, 0")
    k.label(f"{n}_slow2")
    for j in range(4):
        k(f"buffer_load_dwordx4 {ar(4*j,4)}, v2, s[4:7], s11 offen offset:{j*1024} {SC}")
    k(f"""
    s_add_u32 s11, s11, 4096
    s_waitcnt vmcnt(0)
    {smf(0,0,0,0)}
    {smf(0,0,0,1)}
    """)
    k.nop(12)
    for r in range(16): k(f"v_sub_f32 v{S+r}, v{S+r}, v14")
    for r in range(16): k(f"v_exp_f32 v{S+r}, v{S+r}")
    k("s_nop 0")
    for r in range(8): k(f"v_cvt_pk_bf16_f32 v{P+r}, v{S+2*r}, v{S+2*r+1}")
    k("s_nop 1")
    k(pvmf(0, 0, 0, 0)); k(pvmf(0, 0, 0, 1))
    k(f"""
    s_sub_u32 s27, s27, 1
    s_cmp_lg_u32 s27, 0
    s_cbranch_scc1 {n}_slow2
    """)
    k.nop(12)
    k(f"""
    v_mov_b32 v12, v{O+12}
    v_mov_b32 v13, v{O+12}
    s_nop 1
    v_permlane32_swap_b32 v12, v13
    s_branch {n}_fin
    """)
    k.label(f"{n}_end")
    k("s_endpgm")
    kernels.append((k, 256, 256, 100 if STAMP else 48))

stamp_names = []
def build(path):
    gen_prep()
    gen_mega()
    launches = [("prep_kernel", 248, 33792), ("mega_kernel", 256, 163840)]
    hdr = open("cdna_kernels/%s.s.ref" % NAME).read().split("; Override")[0]
    out = hdr
    for nm, g, lds in launches:
        out += f"; @launch kernel={nm} grid=({g},1,1) block=(256,1,1) lds={lds}\n"
    out += '.amdgcn_target "amdgcn-amd-amdhsa--gfx950"\n.text\n'
    nerr = 0
    for k, v, a, s in kernels:
        for e in check_kernel(k):
            print("HAZARD", e); nerr += 1
        out += f".globl {k.name}\n.p2align 8\n.type {k.name},@function\n{k.name}:\n" + k.text() + "\n"
    out += '.section .rodata,"a"\n'
    for k, v, a, s in kernels:
        acc = (v + 3) // 4 * 4
        out += f""".p2align 6
.amdhsa_kernel {k.name}
  .amdhsa_next_free_vgpr {acc + a if a else v}
  .amdhsa_next_free_sgpr {s}
  .amdhsa_accum_offset {acc}
  .amdhsa_group_segment_fixed_size 0
  .amdhsa_kernarg_size 72
  .amdhsa_user_sgpr_count 2
  .amdhsa_user_sgpr_kernarg_segment_ptr 1
  .amdhsa_system_sgpr_workgroup_id_x 1
.end_amdhsa_kernel
"""
    open(path, "w").write(out)
    if STAMP: open(path + ".names", "w").write("\n".join(stamp_names))
    print("wrote", path, len(out), "bytes; hazards:", nerr)

if __name__ == "__main__":
    build(sys.argv[1] if len(sys.argv) > 1 else "cdna_kernels/%s.s" % NAME)
```

```python
import sys, math, os, struct
from asmlib import *

NAME = "interleave_layers__mha_block__dense_activation_relu__prompt"

W2F = 0x000000
WOF = 0x190000
CSW = 0x200000
FLK = 0x280000
FLG = 0x288000
X1  = 0x300000
X2  = 0x4C0000
ST1 = 0x680000
ST2 = 0x6C0000
OF  = 0x700000
HF  = 0x900000
KV  = 0x1000000
KVL = 0x400000
WQI = 0x1800000
TS  = 0x1980000
WS_USED = TS + 0x80000

QSCALE = (28 ** -0.5) * math.log2(math.e)
def f2u(x): return struct.unpack("<I", struct.pack("<f", x))[0]
env = lambda n_, d="0": os.environ.get(n_, d)
STAMP = env("STAMP") != "0"
CLK = "s_memtime" if env("STAMP") == "2" else "s_memrealtime"
NOFAST = env("NOFAST") == "1"
SC = "sc1"
RED_LDS = 114688
XS_LDS, XS_W, XS_SLOT, XS_RG = 86016, 19456, 4608, 1152
MF = "v_mfma_f32_32x32x16_bf16"
MF8 = "v_mfma_f32_32x32x8_bf16"
SPIN = 400000
SELS = {"a": ["start", "qkv first x", "qkv pass1 done", "qkv mfma done", "kv flagged", "kv ready", "att first kv", "att secA done", "att loop done", "o flagged", "end"],
        "b": ["start", "o flagged", "o ready", "op mfma done", "x1 flagged", "x1 ready", "f1 pass1 done", "ffn1 mfma done", "h.b ready", "f2 mfma done", "end"]}
SEL = SELS[env("SEL", "a")]
W2A_ATT = int(env("W2A_ATT", "20"))

class Cnt:
    def __init__(self, k, name, mx): self.k = k; self.n = 0; self.done = 0; self.name = name; self.mx = mx
    def issue(self, line):
        self.k(line); self.n += 1; return self.n
    def need(self, tok):
        if tok is None or tok <= self.done: return ""
        c = self.n - tok
        assert c <= self.mx, (self.name, c)
        self.done = tok
        return f"{self.name}({c})"
    def all_done(self): self.done = self.n

def gen(kname):
    k = Kern(kname)
    n = "L"
    vm = Cnt(k, "vmcnt", 63)
    lg = Cnt(k, "lgkmcnt", 15)
    ool = []
    uid = [0]
    def wait(v=None, l=None):
        s = " ".join(x for x in (vm.need(v), lg.need(l)) if x)
        if s: k("s_waitcnt " + s)
    def run(items):
        for it in items:
            if callable(it): it()
            elif it: k(it)
    def stamp(name):
        if STAMP and name in SEL:
            idx = SEL.index(name)
            k(f"{CLK} s[{80+2*idx}:{81+2*idx}]")
    ACC, STV, RSTD = 16, 80, 12
    PKK, PKV = 64, 72
    XV = 96
    TR1, TR2, PT, D1, VBH, TRP, TAGV, PQ = 208, 209, 210, 211, 212, 213, 214, 216
    CSQ, CS1, MUF, RES = 224, 230, 238, 240
    BR = 112
    OPW, W2A = 64, 144
    PX, PWQ, PWO, PW1, PW2, POUT, PDBG = 48, 50, 52, 56, 58, 60, 62
    S_KVS, S_OFS, S_XT, S_STT, S_HFS, S_OA0, S_OA1, S_HA0, S_HA1, S_WO, S_W2, S_W1, S_XS, S_WQ, S_KVB, S_HSLOW = range(64, 80)
    DQ, DX = 240, 241
    XA0 = 242
    def srd(dst, ptr, size):
        k(f"s_mov_b32 s{dst}, s{ptr}\ns_mov_b32 s{dst+1}, s{ptr+1}\ns_mov_b32 s{dst+2}, {size}\ns_mov_b32 s{dst+3}, 0x20000")
    k(f"""
    s_cmp_ge_u32 s2, 256
    s_cbranch_scc1 {n}_end
    s_load_dwordx16 s[48:63], s[0:1], 0
    s_load_dwordx2 s[4:5], s[0:1], 64
    s_memrealtime s[42:43]
    v_lshrrev_b32 v3, 6, v0
    v_and_b32 v1, 63, v0
    s_mov_b32 s6, {WS_USED}
    v_readfirstlane_b32 s3, v3
    s_mov_b32 s7, 0x20000
    v_lshlrev_b32 v2, 4, v1
    s_lshr_b32 s9, s2, 3
    s_lshr_b32 s8, s9, 4
    s_and_b32 s9, s9, 15
    s_and_b32 s10, s2, 7
    s_lshl_b32 s10, s10, 1
    s_add_u32 s8, s8, s10
    s_lshl_b32 s10, s8, 2
    s_add_u32 s10, s10, s3
    v_lshrrev_b32 v14, 2, v1
    v_and_b32 v15, 3, v1
    v_mul_u32_u24 v{DQ}, 2688, v14
    v_lshl_add_u32 v{DQ}, v15, 4, v{DQ}
    v_lshrrev_b32 v12, 3, v1
    v_and_b32 v13, 7, v1
    v_xor_b32 v13, v13, v12
    v_mul_u32_u24 v{DX}, 896, v12
    v_lshl_add_u32 v{DX}, v13, 4, v{DX}
    s_mul_i32 s11, s10, {32*896}
    s_mul_i32 s40, s3, {16*2688}
    s_mul_i32 s12, s9, 56
    s_add_u32 s40, s40, s12
    s_lshl_b32 s41, s3, 10
    s_mul_i32 s26, s3, {XS_W}
    s_add_u32 s26, s26, {XS_LDS}
    s_mov_b32 s38, {2048*448*2}
    s_mov_b32 s39, 0x20000
    s_mov_b32 s46, {448*1344*2}
    s_mov_b32 s47, 0x20000
    s_waitcnt lgkmcnt(0)
    s_mov_b32 s36, s{PX}
    s_mov_b32 s37, s{PX+1}
    s_mov_b32 s44, s{PWQ}
    s_mov_b32 s45, s{PWQ+1}
    """)
    stamp("start")
    PART_COL = (896, 1792, 0)
    ct = {}
    def chunk0(c):
        k(f"s_add_u32 m0, s26, {(c % 4)*XS_SLOT}")
        for rg in range(4):
            k(f"s_add_u32 s19, s11, {c*128 + rg*(8*896 - XS_RG)}")
            vm.issue(f"buffer_load_dwordx4 v{DX}, s[36:39], s19 offen offset:{rg*XS_RG} lds")
        for p in range(3):
            k(f"s_add_u32 m0, s41, {p*28*1024 + c*4096}")
            k(f"s_add_u32 s19, s40, {PART_COL[p] + c*64*2688}")
            ct[c] = vm.issue(f"buffer_load_dwordx4 v{DQ}, s[44:47], s19 offen lds")
    for c in range(4): chunk0(c)
    k(f"""
    s_or_b32 s24, s2, s3
    s_cmp_lg_u32 s24, 0
    s_cbranch_scc1 {n}_notag
    s_and_b32 s42, s42, 0xfffffff0
    s_bitset1_b32 s43, 31
    v_mov_b32 v{TAGV}, s42
    v_mov_b32 v{TAGV+1}, s43
    s_mov_b32 s12, s{PDBG}
    s_mov_b32 s13, s{PDBG+1}
    s_mov_b32 s14, 256
    s_mov_b32 s15, 0x20000
    s_mov_b64 exec, 1
    buffer_store_dwordx2 {vr(TAGV,2)}, off, s[12:15], 0 sc0 sc1
    s_mov_b64 exec, -1
    """)
    k.label(f"{n}_notag")
    k(f"""
    v_lshrrev_b32 v5, 5, v1
    s_min_u32 s34, s9, 13
    s_cmp_ge_u32 s34, 7
    s_cselect_b32 s12, 1, 0
    s_mul_i32 s33, s12, 7
    s_sub_u32 s33, s34, s33
    s_lshl_b32 s13, s12, 1
    s_and_b32 s14, s3, 1
    s_add_u32 s14, s14, s13
    s_lshl_b32 s28, s8, 2
    s_add_u32 s28, s28, s14
    s_lshr_b32 s15, s3, 1
    s_lshl_b32 s29, s33, 1
    s_add_u32 s29, s29, s15
    s_lshl_b32 s17, s3, 7
    s_lshl_b32 s16, s9, 3
    s_add_u32 s17, s17, s16
    s_lshl_b32 s18, s14, 7
    s_lshl_b32 s16, s29, 3
    s_add_u32 s18, s18, s16
    s_lshl_b32 s15, s15, 10
    v_add_u32 v6, s15, v2
    v_xor_b32 v7, 0x400, v6
    v_lshlrev_b32 v4, 2, v1
    v_and_b32 v0, 15, v1
    v_min_u32 v0, 13, v0
    v_lshlrev_b32 v0, 3, v0
    s_lshl_b32 s16, s3, 7
    v_add_u32 v0, s16, v0
    v_and_b32 v3, 1, v14
    v_add_u32 v3, s13, v3
    v_lshlrev_b32 v3, 7, v3
    v_lshl_add_u32 v3, v15, 3, v3
    s_mul_i32 s16, s3, 7
    s_lshr_b32 s16, s16, 1
    s_lshl_b32 s16, s16, 3
    v_add_u32 v{VBH}, s16, v3
    s_lshl_b32 s16, s3, 5
    v_add_u32 v3, s16, v3
    s_mov_b32 s30, 0
    s_mov_b32 s31, {KV}
    s_lshl_b32 s32, s8, 12
    s_add_u32 s32, s32, {FLG}
    s_mov_b32 s35, 1
    s_mov_b32 s20, -1
    s_mov_b32 s21, 0
    s_mov_b32 s22, 0xf0000000
    s_mov_b32 s23, 0xf0000000
    v_and_b32 v12, 7, v14
    v_mul_u32_u24 v{D1}, 3584, v12
    v_lshl_add_u32 v{D1}, v5, 6, v{D1}
    v_lshl_add_u32 v{D1}, v15, 4, v{D1}
    v_mul_u32_u24 v{PQ}, 896, v12
    v_lshl_add_u32 v{PQ}, v5, 6, v{PQ}
    v_lshl_add_u32 v{PQ}, v15, 4, v{PQ}
    v_and_b32 v12, 3, v14
    v_lshlrev_b32 v12, 6, v12
    v_bfe_u32 v14, v1, 4, 1
    v_lshl_add_u32 v12, v14, 5, v12
    v_lshl_add_u32 v12, v15, 3, v12
    v_lshl_add_u32 v{TR1}, v5, 9, v12
    v_add_u32 v{TR2}, 256, v{TR1}
    v_lshl_add_u32 v{TRP}, v5, 8, v12
    v_bfe_u32 v12, v1, 3, 2
    v_mul_u32_u24 v12, {XS_RG}, v12
    v_and_b32 v13, 7, v1
    v_lshl_add_u32 v12, v13, 7, v12
    v_xor_b32 v13, v13, v5
    v_lshl_add_u32 v12, v13, 4, v12
    v_add_u32 v{XA0}, s26, v12
    v_xor_b32 v{XA0+1}, 32, v{XA0}
    v_xor_b32 v{XA0+2}, 64, v{XA0}
    v_xor_b32 v{XA0+3}, 0x60, v{XA0}
    s_lshl_b32 s12, s9, 6
    s_add_u32 s12, s12, s10
    s_lshl_b32 s{S_KVS}, s12, 12
    s_lshl_b32 s12, s10, 15
    s_lshl_b32 s13, s9, 11
    s_add_u32 s12, s12, s13
    s_add_u32 s{S_OFS}, s12, {OF}
    s_mul_i32 s12, s28, {28*1024}
    s_lshl_b32 s13, s29, 11
    s_add_u32 s{S_XT}, s12, s13
    s_lshl_b32 s12, s28, 12
    s_lshl_b32 s13, s29, 8
    s_add_u32 s{S_STT}, s12, s13
    s_mul_i32 s12, s10, {112*1024}
    s_lshl_b32 s13, s34, 12
    s_add_u32 s12, s12, s13
    s_add_u32 s{S_HFS}, s12, {HF}
    s_lshl_b32 s13, s3, 13
    s_add_u32 s13, s13, {OF}
    s_lshl_b32 s12, s28, 15
    s_add_u32 s{S_OA0}, s12, s13
    s_xor_b32 s12, s12, 0x8000
    s_add_u32 s{S_OA1}, s12, s13
    s_mul_i32 s13, s3, {14*1024}
    s_add_u32 s13, s13, {HF}
    s_mul_i32 s12, s28, {112*1024}
    s_add_u32 s{S_HA0}, s12, s13
    s_xor_b32 s12, s28, 1
    s_mul_i32 s12, s12, {112*1024}
    s_add_u32 s{S_HA1}, s12, s13
    s_lshl_b32 s12, s33, 16
    s_lshl_b32 s13, s3, 14
    s_add_u32 s12, s12, s13
    s_add_u32 s{S_WO}, s12, {WOF}
    s_mul_i32 s12, s33, {112*2048}
    s_mul_i32 s13, s3, {14*2048}
    s_add_u32 s12, s12, s13
    s_add_u32 s{S_W2}, s12, {W2F}
    s_lshr_b32 s12, s3, 1
    s_mul_i32 s12, s12, 1792
    s_lshl_b32 s13, s34, 7
    s_add_u32 s12, s12, s13
    s_and_b32 s13, s3, 1
    s_mul_i32 s13, s13, {28*8*3584}
    s_add_u32 s{S_W1}, s12, s13
    s_mul_i32 s{S_XS}, s10, {28*1024}
    s_mul_i32 s12, s9, {84*1024}
    s_add_u32 s{S_WQ}, s12, {WQI}
    s_lshl_b32 s12, s9, 18
    s_lshl_b32 s13, s3, 12
    s_add_u32 s{S_KVB}, s12, s13
    """)
    k(f"""
    v_and_b32 v12, 15, v1
    v_lshlrev_b32 v12, 7, v12
    v_add_u32 v{PT}, s{S_OFS}, v12
    s_add_u32 s12, s{S_XT}, {X1}
    v_add_u32 v13, s12, v12
    s_mov_b32 vcc_lo, 0xffff0000
    s_mov_b32 vcc_hi, 0
    v_cndmask_b32 v{PT}, v{PT}, v13, vcc
    s_add_u32 s12, s{S_XT}, {X2}
    v_add_u32 v13, s12, v12
    s_mov_b32 vcc_lo, 0
    s_mov_b32 vcc_hi, 0xffff
    v_cndmask_b32 v{PT}, v{PT}, v13, vcc
    s_add_u32 s12, s{S_STT}, {ST1}
    v_add_u32 v13, s12, v12
    s_mov_b32 vcc_hi, 0x30000
    v_cndmask_b32 v{PT}, v{PT}, v13, vcc
    s_add_u32 s12, s{S_STT}, {ST2 - 256}
    v_add_u32 v13, s12, v12
    s_mov_b32 vcc_hi, 0xc0000
    v_cndmask_b32 v{PT}, v{PT}, v13, vcc
    v_lshlrev_b32 v12, 2, v12
    s_lshl_b32 s13, s3, 7
    s_add_u32 s13, s13, s32
    s_sub_u32 s12, s13, {4*512}
    v_add_u32 v13, s12, v12
    s_mov_b32 vcc_hi, 0x01f00000
    v_cndmask_b32 v{PT}, v{PT}, v13, vcc
    s_add_u32 s12, s13, {0x10000 - 9*512}
    v_add_u32 v13, s12, v12
    s_mov_b32 vcc_hi, 0xfe000000
    v_cndmask_b32 v{PT}, v{PT}, v13, vcc
    """)
    for i in range(1, 4):
        k(f"s_xor_b32 s25, s3, {i}\ns_mul_i32 s25, s25, 12288\ns_add_u32 s25, s25, {RED_LDS + (i-1)*4096}\nv_add_u32 v{8+i}, s25, v2")
    k(f"s_mul_i32 s25, s3, 12288\ns_add_u32 s25, s25, {RED_LDS}\nv_add_u32 v8, s25, v2")

    def hstore(lines, sreg=35):
        uid[0] += 1
        u = uid[0]
        k(f"s_cmp_lg_u32 s{sreg}, 0\ns_cbranch_scc1 {n}_hs{u}")
        tok = None
        for l in lines: tok = vm.issue(l)
        k.label(f"{n}_hb{u}")
        ool.append([f"{n}_hs{u}:"] + [l + " " + SC for l in lines] + [f"s_branch {n}_hb{u}"])
        return tok
    def flag(phase, slot_s):
        k(f"s_add_u32 s24, s32, s{slot_s}\ns_mov_b64 exec, 1")
        hstore([f"buffer_store_dwordx2 {vr(TAGV,2)}, off, s[4:7], s24 offset:{phase*512}"])
        k("s_mov_b64 exec, -1")
    def poll_line(phase, va): return f"buffer_load_dwordx2 v[14:15], v{va}, s[4:7], s32 offen offset:{phase*512} {SC}"
    def poll_check(tok, lines, regs=(14,)):
        uid[0] += 1
        u = uid[0]
        wait(tok)
        def chk(lab):
            L = []
            for r in regs: L += [f"v_cmp_ne_u64 vcc, s[42:43], {vr(r,2)}", f"s_cbranch_vccnz {lab}"]
            return L
        run(chk(f"{n}_pl{u}"))
        k.label(f"{n}_pb{u}")
        ool.append([f"{n}_pl{u}:", f"s_mov_b32 s25, {SPIN}", f"{n}_pm{u}:"] + lines +
                   ["s_sub_u32 s25, s25, 1", "s_cmp_eq_u32 s25, 0", f"s_cbranch_scc1 {n}_pb{u}", "s_waitcnt vmcnt(0)"] + chk(f"{n}_pm{u}") + [f"s_branch {n}_pb{u}"])
    def poll(phase, va):
        l = poll_line(phase, va)
        poll_check(vm.issue(l), [l])
    def stats_sum():
        return [f"v_add_f32 v{STV+a}, v{STV+a}, v{STV+b}" for a, b in ((0,1),(2,3),(4,5),(6,7),(8,9),(10,11),(12,13),(0,2),(4,6),(8,10),(0,4),(8,12),(0,8))]
    def stats_fin():
        return [l.strip() for l in f"""
        v_mul_f32 v{STV}, {hex(f2u(1.0/448))}, v{STV}
        v_mov_b32 v{STV+1}, v{STV}
        s_nop 1
        v_permlane32_swap_b32 v{STV}, v{STV+1}
        v_fma_f32 v{STV+2}, -v{STV}, v{STV}, v{STV+1}
        v_max_f32 v{STV+2}, 0, v{STV+2}
        v_add_f32 v{STV+2}, {hex(f2u(1e-5))}, v{STV+2}
        v_rsq_f32 v{RSTD}, v{STV+2}
        v_sub_f32 v{STV}, 0, v{STV}
        v_cvt_pk_bf16_f32 v{STV+3}, v{STV}, v{STV}
        v_and_b32 v{STV+4}, 0xffff0000, v{STV+3}
        v_sub_f32 v{STV+4}, v{STV}, v{STV+4}
        v_cvt_pk_bf16_f32 v{STV+4}, v{STV+4}, v{STV+4}
        v_cndmask_b32 v{MUF}, 0, v{STV+3}, s[20:21]
        v_cndmask_b32 v{MUF+1}, 0, v{STV+4}, s[20:21]
        """.strip().split("\n")]
    def split2(dst, src, t):
        return [f"v_cvt_pk_bf16_f32 v{t}, v{src}, v{src}", f"v_and_b32 v{t}, 0xffff0000, v{t}", f"v_sub_f32 v{t}, v{src}, v{t}",
                f"v_cvt_pk_bf16_f32 v{dst}, v{src}, v{t}", f"v_mov_b32 v{dst+1}, v{dst}"]
    def spread(side, items, start, per):
        for i, it in enumerate(items):
            side.setdefault(start + i // per, []).append(it)
        return start + (len(items) + per - 1) // per
    def trread(dst_pref, dst, a1, a2, off1, off2):
        lg.issue(f"ds_read_b64_tr_b16 {vr(dst,2,dst_pref)}, v{a1} offset:{off1}")
        return lg.issue(f"ds_read_b64_tr_b16 {vr(dst+2,2,dst_pref)}, v{a2} offset:{off2}")
    bt = {}
    def bounce_w():
        k(f"s_lshl_b32 s16, s3, 8\ns_add_u32 s16, s16, {RED_LDS + 8192}\nv_add_u32 v14, s16, v4")
        bt[0] = lg.issue(f"ds_write_b32 v14, v{RSTD}")
        k("v_lshl_add_u32 v14, v5, 4, s16")
    def bounce_r():
        wait(None, bt[0])
        for q in range(4): bt[1] = lg.issue(f"ds_read_b128 {vr(STV+4*q,4)}, v14 offset:{32*q}")
    def qkv_mfma(t, wf, xf, cin, op=MF):
        acc = vr(ACC + 16*t, 16)
        a_, b_ = (xf, wf) if t == 2 else (wf, xf)
        k(f"{op} {acc}, {a_}, {b_}, {acc if cin else '0'}")

    CT = PKK
    k(f"""
    s_lshl_b32 s16, s3, 10
    v_add_u32 v14, s16, v{TR1}
    v_add_u32 v15, s16, v{TR2}
    v_add_u32 v{PQ+1}, {56*1024}, v14
    v_add_u32 v{PQ+2}, {56*1024}, v15
    v_mov_b32 v{STV+8}, 0x3f803f80
    v_and_b32 v13, 31, v1
    v_mul_u32_u24 v13, 896, v13
    v_lshl_add_u32 v13, v5, 4, v13
    """)
    for r in range(8): k(f"v_mov_b32 v{STV+r}, 0")
    late = {}
    STG = 3 * XS_SLOT
    def late_loads():
        k(f"""
        s_mul_i32 s12, s28, {32*896}
        s_lshl_b32 s13, s29, 6
        s_add_u32 s12, s12, s13
        """)
        vm.issue(f"buffer_load_dwordx4 v[16:19], v13, s[36:39], s12 offen")
        vm.issue(f"buffer_load_dwordx4 v[20:23], v13, s[36:39], s12 offen offset:32")
        srd(44, PDBG, 256)
        vm.issue(f"buffer_load_dwordx2 {vr(TAGV,2)}, off, s[44:47], 0 sc0 sc1")
        k(f"""
        s_cmp_ge_u32 s34, 7
        s_cselect_b32 s12, 64, 0
        s_add_u32 s12, s12, s10
        s_min_u32 s14, s12, 111
        s_and_b32 s15, s12, 31
        s_mul_i32 s13, s14, {16*896}
        s_lshl_b32 s16, s33, 7
        s_add_u32 s13, s13, s16
        s_add_u32 m0, s26, {STG}
        """)
        srd(36, PW2, 448*1792*2)
        vm.issue(f"buffer_load_dwordx4 v{PQ}, s[36:39], s13 offen lds")
        k(f"s_add_u32 s13, s13, {8*896 - 1024}")
        vm.issue(f"buffer_load_dwordx4 v{PQ}, s[36:39], s13 offen offset:1024 lds")
        k(f"""
        s_lshr_b32 s13, s15, 1
        s_mul_i32 s13, s13, {28*896}
        s_and_b32 s12, s15, 1
        s_mul_i32 s12, s12, {16*896}
        s_add_u32 s13, s13, s12
        s_add_u32 s13, s13, s16
        s_add_u32 m0, s26, {STG + 2048}
        """)
        srd(36, PWO, 448*448*2)
        vm.issue(f"buffer_load_dwordx4 v{PQ}, s[36:39], s13 offen lds")
        k(f"s_add_u32 s13, s13, {8*896 - 1024}")
        late["prep"] = vm.issue(f"buffer_load_dwordx4 v{PQ}, s[36:39], s13 offen offset:1024 lds")
    for c in range(7):
        wait(ct[c])
        for i in range(4):
            xr = lg.issue(f"ds_read_b128 {vr(XV+4*(4*c+i),4)}, v{XA0+i} offset:{(c%4)*XS_SLOT}")
        k("s_barrier")
        if c == 0: stamp("qkv first x")
        tk = [trread("v", CT + 4*p, 14 if p < 2 else PQ+1, 15 if p < 2 else PQ+2, (p % 2)*28*1024 + c*4096, (p % 2)*28*1024 + c*4096) for p in range(3)]
        rd = {}
        def rdf(f):
            i, p = f // 2, f % 2
            off = p*28*1024 + (4*c + i)*1024
            rd[f] = trread("a", BR + 4*f, TR1, TR2, off, off)
        for f in range(2): rdf(f)
        wait(None, xr)
        if c + 4 < 7: chunk0(c + 4)
        if c == 3: late_loads()
        for f in range(2, 4): rdf(f)
        for i in range(4):
            for j_ in range(4):
                x = XV + 4*(4*c+i) + j_
                k(f"v_dot2c_f32_bf16 v{STV + (j_ & 1)}, v{x}, v{STV+8}")
                k(f"v_dot2c_f32_bf16 v{STV + 2 + (j_ & 1)}, v{x}, v{x}")
        wait(None, rd[3])
        for f in range(4, 8): rdf(f)
        for j_ in range(4):
            for p in range(3):
                k(f"v_dot2c_f32_bf16 v{STV+4+p}, v{CT+4*p+j_}, v{STV+8}")
        for f in range(8):
            if f == 4: wait(None, rd[7])
            qkv_mfma(1 + f % 2, ar(BR + 4*f, 4), vr(XV + 4*(4*c + f//2), 4), not (c == 0 and f < 2))
    k(f"""
    s_lshl_b32 s12, s10, 10
    s_add_u32 s13, s10, 64
    s_min_u32 s13, s13, 83
    s_lshl_b32 s13, s13, 10
    v_add_u32 v14, s12, v2
    v_add_u32 v15, s13, v2
    ds_read_b128 a[8:11], v14
    ds_read_b128 a[12:15], v15
    """)
    for p in range(3):
        k(f"v_mov_b32 v{CT+p}, v{STV+4+p}")
    k(f"v_add_f32 v{STV}, v{STV}, v{STV+1}\nv_add_f32 v{STV+2}, v{STV+2}, v{STV+3}")
    for p in range(3):
        k(f"v_permlane32_swap_b32 v{CT+p}, v{STV+4+p}")
    k(f"v_permlane32_swap_b32 v{STV}, v{STV+2}")
    for p in range(3):
        k(f"v_add_f32 v{CT+p}, v{CT+p}, v{STV+4+p}")
    k(f"""
    v_add_f32 v{STV}, v{STV}, v{STV+2}
    v_add_u32 v13, s26, v2
    ds_write_b128 v13, {vr(CT,4)} offset:{4*XS_SLOT}
    v_add_u32 v13, s26, v{TRP}
    """)
    wait(late["prep"])
    for e_ in range(2): trread("a", 4*e_, 13, 13, STG + e_*512, STG + e_*512 + 1024)
    for e_ in range(2): trread("v", PQ + 4*e_, 13, 13, STG + 2048 + e_*512, STG + 2048 + e_*512 + 1024)
    run(stats_fin())
    k(f"""
    v_readfirstlane_b32 s43, v{TAGV+1}
    v_readfirstlane_b32 s42, v{TAGV}
    v_permlane32_swap_b32 v16, v18
    v_permlane32_swap_b32 v17, v19
    v_permlane32_swap_b32 v20, v22
    v_permlane32_swap_b32 v21, v23
    s_mul_i32 s12, s33, {112*2048}
    s_lshl_b32 s13, s14, 11
    s_add_u32 s12, s12, s13
    s_add_u32 s12, s12, {W2F}
    s_lshl_b32 s13, s33, 16
    s_lshl_b32 s16, s15, 11
    s_add_u32 s13, s13, s16
    s_add_u32 s13, s13, {WOF}
    s_bitcmp1_b32 s15, 0
    s_cselect_b32 s25, 0, -1
    s_mov_b32 s24, -1
    v_add_u32 v13, {XS_LDS + 4*XS_SLOT}, v2
    """)
    for i in range(8):
        k(f"v_lshlrev_b32 v{RES+2*i}, 16, v{16+i}")
        k(f"v_and_b32 v{RES+2*i+1}, 0xffff0000, v{16+i}")
    k("s_waitcnt lgkmcnt(0)\ns_barrier")
    lg.all_done()
    for w_ in range(4): lg.issue(f"ds_read_b128 {vr(16+4*w_,4)}, v13 offset:{w_*XS_W}")
    vm.issue(f"buffer_store_dwordx4 a[8:11], v14, s[4:7], s{S_WQ} offen {SC}")
    vm.issue(f"buffer_store_dwordx4 a[12:15], v15, s[4:7], s{S_WQ} offen {SC}")
    for e_ in range(2):
        for r in (2, 3): k(f"v_cndmask_b32 v{PQ+4*e_+r}, 0, v{PQ+4*e_+r}, s[24:25]")
    for e_ in range(2):
        vm.issue(f"buffer_store_dwordx4 {ar(4*e_,4)}, v2, s[4:7], s12 offen offset:{e_*1024} {SC}")
        vm.issue(f"buffer_store_dwordx4 {vr(PQ+4*e_,4)}, v2, s[4:7], s13 offen offset:{e_*1024} {SC}")
    k(f"s_cmp_eq_u32 s43, 0\ns_cbranch_scc1 {n}_tg")
    k.label(f"{n}_tb")
    ool.append([f"{n}_tg:", f"s_mov_b32 s16, {SPIN}",
                f"{n}_tm:", f"buffer_load_dwordx2 {vr(TAGV,2)}, off, s[44:47], 0 sc0 sc1",
                "s_sub_u32 s16, s16, 1", "s_cmp_eq_u32 s16, 0", f"s_cbranch_scc1 {n}_tb", "s_waitcnt vmcnt(0)",
                f"v_readfirstlane_b32 s43, v{TAGV+1}", f"v_readfirstlane_b32 s42, v{TAGV}", "s_cmp_eq_u32 s43, 0", f"s_cbranch_scc1 {n}_tm", f"s_branch {n}_tb"])
    bounce_w()
    k("s_waitcnt lgkmcnt(0)"); lg.all_done()
    for p in range(3):
        k(f"v_add_f32 v{16+p}, v{16+p}, v{20+p}\nv_add_f32 v{24+p}, v{24+p}, v{28+p}")
    bounce_r()
    for p, t in enumerate((1, 2, 0)):
        k(f"v_add_f32 v{16+p}, v{16+p}, v{24+p}")
        run(split2(CSQ + 2*t, 16 + p, 20 + p))
    k("s_waitcnt lgkmcnt(0)"); lg.all_done()
    k(f"s_branch {n}_qkv2")

    LA = 5
    def gpass(seq, frag_off, xreg, mf, side, xt=None, rd=None):
        rd = rd if rd is not None else {}
        def read(f):
            o1, o2, a1, a2 = frag_off(*seq[f])
            rd[f] = trread("a", BR + 4*(f % 8), a1, a2, o1, o2)
        nread = len(rd)
        while nread < LA: read(nread); nread += 1
        for i, (ks, t) in enumerate(seq):
            if nread < len(seq): read(nread); nread += 1
            if i % 2 == 0: wait(xt[ks] if xt else None, rd[i + 1])
            mf(i, ks, t, ar(BR + 4*(i % 8), 4), xreg(ks))
            run(side.get(i, []))
    def preread(seq, frag_off):
        rd = {}
        for f in range(LA):
            o1, o2, a1, a2 = frag_off(*seq[f]); rd[f] = trread("a", BR + 4*f, a1, a2, o1, o2)
        return rd

    def x_stream(XIN, ST, xreg, extra=()):
        k(f"s_add_u32 s11, s{S_XS}, {XIN}\ns_lshl_b32 s14, s10, 12\ns_add_u32 s14, s14, {ST}")
        xt = {}
        def xload(ks):
            def f():
                if ks and ks % 4 == 0: k("s_add_u32 s11, s11, 4096")
                xt[ks] = vm.issue(f"buffer_load_dwordx4 {xreg(ks)}, v2, s[4:7], s11 offen offset:{(ks%4)*1024} {SC}")
            return f
        side = {}
        stt = {}
        def sload(i):
            def f(): stt[i] = vm.issue(f"buffer_load_dword v{STV+i}, v4, s[4:7], s14 offen offset:{i*256} {SC}")
            return f
        for ks in range(8, 28): side.setdefault(2*(ks-8), []).append(xload(ks))
        for i in range(14): side.setdefault(2*i + 1, []).append(sload(i))
        for i, ex in enumerate(extra): side.setdefault(29 + 2*i, []).append(ex)
        side.setdefault(40, []).append(lambda: wait(stt[13]))
        e = spread(side, stats_sum() + stats_fin(), 40, 3)
        return xt, side, [xload(ks) for ks in range(8)], e

    k.label(f"{n}_qkv1")
    xv = lambda ks: vr(XV + 4*ks, 4)
    xt, side, first, e = x_stream(X2, ST2, xv)
    run(first)
    k(f"v_mov_b32 v{TR1}, v{TRP}\nv_add_u32 v{TR2}, 512, v{TRP}")
    wait(xt[0]); k("s_barrier")
    stamp("qkv first x")
    side.setdefault(e, []).append(bounce_w)
    side.setdefault(e + 3, []).append(bounce_r)
    gpass([(ks, t) for ks in range(28) for t in (1, 2)], lambda ks, t: ((t-1)*28*1024 + ks*1024,)*2 + (TR1, TR2), xv,
          lambda i, ks, t, wf, xf: qkv_mfma(t, wf, xf, ks > 0), side, xt)
    wait(None, lg.n)

    k.label(f"{n}_qkv2")
    stamp("qkv pass1 done")
    aq, ak, av = ACC, ACC + 16, ACC + 32
    k(f"v_add_u32 v{TR1}, {56*1024}, v{TR1}\nv_add_u32 v{TR2}, {56*1024}, v{TR2}")
    qkv_mfma(0, vr(CSQ, 2), vr(MUF, 2), False, MF8)
    seqq = [(ks, 0) for ks in range(28)]
    qoff = lambda ks, t: (ks*1024,)*2 + (TR1, TR2)
    rdq = preread(seqq, qoff)
    qkv_mfma(1, vr(CSQ+2, 2), vr(MUF, 2), True, MF8)
    k(f"""
    s_add_u32 s12, s{S_KVS}, s31
    v_mov_b32 v13, 0x3f803f80
    v_and_b32 v15, 31, v1
    v_cmp_eq_u32 vcc, 28, v15
    """)
    qkv_mfma(2, vr(CSQ+4, 2), vr(MUF, 2), True, MF8)
    k("s_nop 0\nv_cndmask_b32 v15, 0, v13, vcc")
    side = {}
    kvt = {}
    ep = [f"v_mul_f32 v{ak+i}, v{RSTD}, v{ak+i}" for i in range(16)]
    ep += [f"v_cvt_pk_bf16_f32 v{PKK+i}, v{ak+2*i}, v{ak+2*i+1}" for i in range(8)]
    ep += [f"v_cndmask_b32 v{PKK+6}, v13, v{PKK+6}, s[20:21]", f"v_cndmask_b32 v{PKK+7}, v13, v{PKK+7}, s[20:21]"]
    ep += [lambda: vm.issue(f"buffer_store_dwordx4 {vr(PKK,4)}, v2, s[4:7], s12 offen {SC}")]
    ep += [f"v_mul_f32 v{av+i}, v{STV+i}, v{av+i}" for i in range(4)]
    ep += [lambda: vm.issue(f"buffer_store_dwordx4 {vr(PKK+4,4)}, v2, s[4:7], s12 offen offset:1024 {SC}")]
    ep += [f"v_mul_f32 v{av+i}, v{STV+i}, v{av+i}" for i in range(4, 16)]
    ep += [f"v_cvt_pk_bf16_f32 v{PKV+i}, v{av+2*i}, v{av+2*i+1}" for i in range(8)]
    ep += [f"v_cndmask_b32 v{PKV+i}, v{PKV+i}, v15, s[22:23]" for i in range(4)]
    ep += [lambda: vm.issue(f"buffer_store_dwordx4 {vr(PKV,4)}, v2, s[4:7], s12 offen offset:2048 {SC}")]
    ep += [f"v_cndmask_b32 v{PKV+i}, v{PKV+i}, v15, s[22:23]" for i in range(4, 8)]
    def lastkv(): kvt[0] = vm.issue(f"buffer_store_dwordx4 {vr(PKV+4,4)}, v2, s[4:7], s12 offen offset:3072 {SC}")
    ep += [lastkv]
    e = spread(side, ep, 1, 3)
    misc = f"""v_mul_f32 v14, {hex(f2u(QSCALE))}, v{RSTD}
    s_lshl_b32 s16, s3, 11
    s_add_u32 s16, s16, {RED_LDS}
    v_add_u32 v13, s16, v2
    s_add_u32 s16, s{S_KVB}, s31
    s_add_u32 s44, s4, s16
    s_addc_u32 s45, s5, 0
    s_mov_b32 s46, 0x40000
    s_mov_b32 s47, 0x20000
    s_lshl_b32 s11, s8, 14
    s_mov_b32 s36, s{PW1}
    s_mov_b32 s37, s{PW1+1}
    s_mov_b32 s38, {448*1792*2}
    s_mov_b32 s39, 0x20000
    s_mov_b32 s40, s{S_W1}
    s_mul_i32 s41, s3, {28*1024}
    s_mov_b32 s13, s{S_WO}
    s_mov_b32 s27, s{S_W2}""".split("\n")
    spread(side, misc, e, 3)
    gpass(seqq, qoff, xv, lambda i, ks, t, wf, xf: qkv_mfma(0, wf, xf, True), side, None, rdq)
    stamp("qkv mfma done")
    AD = 80
    for i in range(4):
        k(f"v_add_u32 v{AD+i}, {i*(8*3584-1024)}, v{D1}")
    k(f"""
    v_lshlrev_b32 v{AD+5}, 3, v1
    v_and_b32 v{AD+4}, 0x78, v{AD+5}
    s_lshl_b32 s14, s30, 13
    s_lshl_b32 s15, s9, 9
    s_add_u32 s15, s15, {FLK}
    s_add_u32 s14, s14, s15
    s_lshl_b32 s19, s3, 7
    s_add_u32 s14, s14, s19
    """)
    for r in range(12, 16): k(f"v_cndmask_b32 v{aq+r}, 0, v{aq+r}, s[20:21]")
    for i in range(8):
        k(f"v_pk_mul_f32 {vr(aq+2*i,2)}, {vr(aq+2*i,2)}, {vr(14,2)} op_sel_hi:[1,0]")
    k(f"v_pk_mul_f32 {vr(MUF,2)}, {vr(aq,2)}, {vr(ak,2)}")
    for i in range(1, 8):
        k(f"v_pk_fma_f32 {vr(MUF,2)}, {vr(aq+2*i,2)}, {vr(ak+2*i,2)}, {vr(MUF,2)}")
    k(f"v_add_f32 v{MUF}, v{MUF}, v{MUF+1}")
    k(f"v_mov_b32 v{MUF+1}, v{MUF}")
    for i in range(4):
        k(f"v_cvt_pk_bf16_f32 v{PQ+i}, v{aq+2*i}, v{aq+2*i+1}")
    k(f"""
    v_permlane32_swap_b32 v{MUF}, v{MUF+1}
    ds_write_b128 v13, {vr(PQ,4)}
    v_add_f32 v{MUF}, v{MUF}, v{MUF+1}
    v_sub_f32 v{MUF}, 0, v{MUF}
    v_cndmask_b32 v{aq+12}, v{MUF}, v{aq+12}, s[20:21]
    """)
    for i in range(4, 8):
        k(f"v_cvt_pk_bf16_f32 v{PQ+i}, v{aq+2*i}, v{aq+2*i+1}")
    k(f"""
    ds_write_b128 v13, {vr(PQ+4,4)} offset:1024
    s_add_u32 s16, s33, 7
    s_cmp_ge_u32 s34, 7
    s_cselect_b32 s16, s33, s16
    s_lshl_b32 s16, s16, 9
    s_add_u32 s16, s16, {FLK}
    s_lshl_b32 s24, s8, 3
    s_add_u32 s24, s24, s14
    s_getreg_b32 s25, hwreg(HW_REG_XCC_ID, 0, 4)
    s_or_b32 s25, s25, s42
    v_mov_b32 v14, s25
    v_mov_b32 v15, s43
    s_lshl_b32 s25, s9, 3
    s_add_u32 s25, s25, s32
    s_waitcnt lgkmcnt(0)
    s_barrier
    """)
    lg.all_done()
    Q, OV, S, P, RED = 16, 48, 112, 144, 160
    OA = RED
    for i in range(4):
        k(f"v_xor_b32 v12, {(i^3)*2048}, v13" if i != 3 else "v_mov_b32 v12, v13")
        k(f"ds_read_b128 {vr(Q+8*i,4)}, v12")
        k(f"ds_read_b128 {vr(Q+8*i+4,4)}, v12 offset:1024")
    def kvflag():
        wait(kvt[0])
        k("s_mov_b64 exec, 1")
        vm.issue(f"buffer_store_dwordx2 {vr(TAGV,2)}, off, s[4:7], s24 {SC}")
        vm.issue(f"buffer_store_dwordx2 v[14:15], off, s[4:7], s25 offset:{5*512} {SC}")
        k("s_mov_b64 exec, -1")
        stamp("kv flagged")
    gather = f"buffer_load_dword v{AD+7}, v{PT}, s[4:7], 0 offen {SC}"
    k(f"""
    v_and_b32 v{AD+6}, 31, v1
    v_lshlrev_b32 v{AD+6}, 7, v{AD+6}
    v_mul_u32_u24 v12, {56*1024}, v5
    v_add_u32 v{AD+6}, v12, v{AD+6}
    """)
    kvflag()
    if env("X_NOPT") != "1": vm.issue(gather)
    k("s_waitcnt lgkmcnt(0)\ns_barrier")
    def kf(nn, c): return vr(PKK + 4*c, 4) if nn == 0 else ar((nn % 3)*16 + 4*c, 4)
    def vf(nn, c): return vr(PKV + 4*c, 4) if nn == 0 else ar((nn % 3)*16 + 8 + 4*c, 4)
    def oacc(i): return vr(OV, 16) if i == 3 else vr(OA + 16*i, 16)
    def smf(u, c):
        nn, i = u // 4, u % 4
        d = vr(S + 16*(u % 2), 16)
        return f"{MF} {d}, {kf(nn,c)}, {vr(Q+8*i+4*c,4)}, {'0' if c == 0 else d}"
    def pvmf(u, c):
        nn, i = u // 4, u % 4
        d = oacc(i)
        return f"{MF} {d}, {vf(nn,c)}, {vr(P+8*(u%2)+4*c,4)}, {'0' if (nn == 0 and c == 0) else d}"
    def kvl(nn, j_):
        return f"buffer_load_dwordx4 {ar((nn%3)*16+4*j_,4)}, v2, s[44:47], s11 offen offset:{j_*1024} {SC}"
    adv = ["s_add_u32 s11, s11, 16384", "s_and_b32 s11, s11, 0x3ffff"]
    def unit(u, m, slots, pre=()):
        sb = S + 16*(u % 2); pb = P + 8*(u % 2)
        ex = [f"v_exp_f32 v{sb+r}, v{sb+r}" for r in range(16)]
        cv = [f"v_cvt_pk_bf16_f32 v{pb+r}, v{sb+2*r}, v{sb+2*r+1}" for r in range(8)]
        grp = [[ex[0], ex[1], ex[2], ex[3], cv[0], ex[4]], [ex[5], cv[1], ex[6], ex[7], cv[2], ex[8]],
               [ex[9], cv[3], ex[10], ex[11], cv[4], ex[12]], [ex[13], ex[14], cv[5], ex[15], cv[6], cv[7]]]
        run(pre)
        for p in range(4):
            k(m[p])
            run(slots.get(p, []))
            run(grp[p])
    def std_m(u): return [smf(u+1, 0), smf(u+1, 1), pvmf(u-1, 0), pvmf(u-1, 1)]
    k(smf(0, 0)); k(smf(0, 1))
    k.nop(11)
    unit(0, [smf(1, 0), smf(1, 1), "", ""], {})
    unit(1, std_m(1), {})
    unit(2, std_m(2), {})
    kvp = f"buffer_load_dwordx2 v[14:15], v{AD+4}, s[4:7], s14 offen {SC}"
    pl = {}
    def kvpoll(): pl[0] = vm.issue(kvp)
    unit(3, ["", "", pvmf(2, 0), pvmf(2, 1)], {0: [kvpoll]})
    poll_check(pl[0], [kvp])
    stamp("kv ready")
    kt = {}
    for nn in (1, 2):
        run(adv)
        for j_ in range(4):
            t_ = vm.issue(kvl(nn, j_))
            if j_ == 1: kt[(nn, "k")] = t_
            kt[nn] = t_
    wp = [f"buffer_load_dwordx2 v[14:15], v{AD+5}, s[4:7], s15 offen {SC}", f"buffer_load_dwordx2 v[12:13], v{AD+5}, s[4:7], s16 offen {SC}"]
    vm.issue(wp[0]); pl[1] = vm.issue(wp[1])
    k(pvmf(3, 0)); k(pvmf(3, 1))
    wait(kt[(1, "k")])
    stamp("att first kv")
    k(smf(4, 0)); k(smf(4, 1))
    k.nop(11)
    def opw(idx):
        kk, nu = idx // 2, idx % 2
        def f():
            if idx and idx % 4 == 0: k("s_add_u32 s13, s13, 4096")
            vm.issue(f"buffer_load_dwordx4 {ar(OPW+8*kk+4*nu,4)}, v{6+nu}, s[4:7], s13 offen offset:{(kk%2)*2048} {SC}")
        return f
    def kvi(nn, j_):
        def f():
            if j_ == 0: run(adv)
            kt[nn] = vm.issue(kvl(nn, j_))
        return f
    oi = 0
    for u in range(4, 12):
        nn, i = u // 4, u % 4
        sl = {}
        if i < 2:
            sl[1] = [kvi(nn + 2, 2*i)]; sl[3] = [kvi(nn + 2, 2*i + 1)]
            if u >= 8:
                for p in (0, 2): sl[p] = [opw(oi)]; oi += 1
        else:
            for p in (0, 1, 3): sl[p] = [opw(oi)]; oi += 1
        m = std_m(u)
        if u == 4: m[2] = m[3] = ""
        pre = []
        if u == 5: pre = [lambda: wait(kt[1])]
        if u == 6: pre = [lambda: poll_check(pl[1], wp, regs=(14, 12))]
        if i == 3: pre = [lambda nn=nn: wait(kt[nn + 1])]
        unit(u, m, sl, pre)
    assert oi == 16
    k("s_mov_b32 s26, 3")
    stamp("att secA done")
    def dma_slots(sl, t, cnt):
        pos = [(4*t+2, 1), (4*t+2, 3), (4*t+3, 1), (4*t+3, 3)]
        for q in range(cnt):
            L = [f"buffer_load_dwordx4 v{AD+q}, s[36:39], s40 offen offset:{q*1024} lds"]
            if q == cnt - 1: L += [f"s_add_u32 s40, s40, {cnt*8*3584}", f"s_add_u32 s41, s41, {cnt*1024}"]
            sl[pos[q]] = (("dma",), L)
        sl[(4*t+2, 0)] = (None, ["s_mov_b32 m0, s41"])
    def kv_slots(sl, t, nn):
        sl[(4*t, 1)] = (("kv", t + 2), adv + [kvl(nn + 2, 0)])
        sl[(4*t, 3)] = (("kv", t + 2), [kvl(nn + 2, 1)])
        sl[(4*t+1, 1)] = (("kv", t + 2), [kvl(nn + 2, 2)])
        sl[(4*t+1, 3)] = (("kv", t + 2), [kvl(nn + 2, 3)])
    slL = {}
    for t in range(3):
        kv_slots(slL, t, 3 + t)
        dma_slots(slL, t, (4, 4, 1)[t])
    slT = {}
    for t in range(2): kv_slots(slT, t, 12 + t)
    dma_slots(slT, 0, 1)
    def w2a_lines(idx):
        kk, nu = idx // 2, idx % 2
        return (["s_add_u32 s27, s27, 4096"] if idx and idx % 4 == 0 else []) + \
               [f"buffer_load_dwordx4 {ar(W2A+8*kk+4*nu,4)}, v{6+nu}, s[4:7], s27 offen offset:{(kk%2)*2048} {SC}"]
    if env("X_NOPT") != "1":
        slT[(6, 1)] = (("pt",), [gather])
        slT[(6, 3)] = (("pt",), [f"s_cmp_eq_u32 s30, 0", f"s_cselect_b32 s19, 0x7fffffff, s{S_HFS}", f"buffer_load_dword v{AD+7}, v{AD+6}, s[4:7], s19 offen {SC}"])
    slT[(7, 1)] = (("xid",), [f"buffer_load_dwordx2 v[14:15], v{AD+4}, s[4:7], s32 offen offset:{5*512} {SC}"])
    free = [(u, p) for u in range(14) for p in (2, 1, 3) if (u, p) not in slT]
    cntu = {}
    idx = 0
    for (u, p) in free:
        used = sum(1 for (a, b), v_ in slT.items() if a == u and v_[0])
        if idx < W2A_ATT and used < (3 if W2A_ATT > 17 else 2):
            slT[(u, p)] = (("w",), None, idx); idx += 1
    assert idx == W2A_ATT, idx
    order = sorted(pos for pos, v_ in slT.items() if v_[0] == ("w",))
    for i_, pos in enumerate(order): slT[pos] = (("w",), w2a_lines(i_))
    ops = [("kv", 4)] + [("x",)] * (vm.n - kt[4])
    wcnt = {}
    for it in range(4):
        sl = slL if it < 3 else slT
        for uu in range(12 if it < 3 else 16):
            t, i = uu // 4, uu % 4
            if i == 3 and not (it == 3 and t == 3):
                needt = 3 + 3*it + t + 1
                ix = max(x for x, o in enumerate(ops) if o == ("kv", needt))
                key = (it == 3, uu)
                wcnt[key] = min(wcnt.get(key, 63), len(ops) - 1 - ix)
            for p in range(4):
                if (uu, p) in sl and sl[(uu, p)][0]:
                    tag = sl[(uu, p)][0]
                    ops.append(("kv", 3 + 3*it + tag[1]) if tag[0] == "kv" else tag)
    k(".p2align 6")
    k.label(f"{n}_loop")
    for uu in range(12):
        u = 12 + uu
        slots = {p: list(slL[(uu, p)][1]) for p in range(4) if (uu, p) in slL}
        if uu == 11: slots.setdefault(3, []).extend(["s_sub_u32 s26, s26, 1", "s_cmp_lg_u32 s26, 0"])
        unit(u, std_m(u), slots, [f"s_waitcnt vmcnt({wcnt[(False, uu)]})"] if (False, uu) in wcnt else [])
    k(f"s_cbranch_scc1 {n}_loop")
    def owr(i, q): return f"ds_write_b128 v{8+(i^3)}, {vr(OA+16*i+4*q,4)} offset:{q*1024}"
    for uu in range(16):
        u = 48 + uu
        slots = {p: list(slT[(uu, p)][1]) for p in range(4) if (uu, p) in slT}
        pre = [f"s_waitcnt vmcnt({wcnt[(True, uu)]})"] if (True, uu) in wcnt else []
        m = std_m(u)
        if u == 61: m = [pvmf(60, 0), pvmf(60, 1), smf(62, 0), smf(62, 1)]
        if u == 62:
            m = [pvmf(61, 0), pvmf(61, 1), smf(63, 0), smf(63, 1)]; slots = {p: [owr(0, p)] for p in range(4)}; pre = ["s_nop 3"]
        if u == 63:
            m = [pvmf(62, 0), pvmf(62, 1), "", ""]; slots = {p: [owr(1, p)] for p in range(4)}; pre = ["s_nop 2"]
        unit(u, m, slots, pre)
    for q in range(2): k(owr(2, q))
    k(pvmf(63, 0)); k(pvmf(63, 1))
    for q in range(2, 4): k(owr(2, q))
    stamp("att loop done")
    k(f"""
    s_getreg_b32 s25, hwreg(HW_REG_XCC_ID, 0, 4)
    s_or_b32 s24, s25, s42
    s_mov_b32 s25, s43
    s_waitcnt vmcnt(0) lgkmcnt(0)
    s_barrier
    """)
    vm.all_done(); lg.all_done()
    for j_ in range(12):
        k(f"ds_read_b128 {vr(RED+4*j_,4)}, v8 offset:{j_*1024}")
    k(f"""
    v_cmp_ne_u64 vcc, s[24:25], v[14:15]
    s_mov_b32 s14, {hex(f2u(2.0**-40))}
    s_mov_b32 s16, {hex(f2u(2.0**40))}
    s_cmp_lg_u64 vcc, 0
    s_cselect_b32 s35, 1, {1 if NOFAST else 0}
    s_xor_b32 s{S_HSLOW}, s30, 1
    s_or_b32 s{S_HSLOW}, s{S_HSLOW}, s35
    """)
    for s_ in range(3):
        k(f"s_waitcnt lgkmcnt({8-4*s_})")
        for i in range(8):
            k(f"v_pk_add_f32 {vr(OV+2*i,2)}, {vr(OV+2*i,2)}, {vr(RED+16*s_+2*i,2)}")
    k(f"""
    v_mov_b32 v12, v{OV+12}
    v_mov_b32 v13, v{OV+12}
    s_mov_b32 s11, s{S_OA0}
    s_mov_b32 s12, s{S_OA1}
    v_permlane32_swap_b32 v12, v13
    v_cmp_lt_f32 vcc, s14, v13
    v_cmp_gt_f32 s[24:25], s16, v13
    s_and_b64 vcc, vcc, s[24:25]
    s_cmp_eq_u64 vcc, exec
    s_cbranch_scc0 {n}_slow
    """)
    k.label(f"{n}_fin")
    k(f"v_rcp_f32 v12, v13\ns_nop 0")
    for i in range(8):
        k(f"v_pk_mul_f32 {vr(OV+2*i,2)}, {vr(OV+2*i,2)}, {vr(12,2)} op_sel_hi:[1,0]")
    for i in range(8):
        k(f"v_cvt_pk_bf16_f32 v{P+i}, v{OV+2*i}, v{OV+2*i+1}")
    ot = hstore([f"buffer_store_dwordx4 {vr(P,4)}, v2, s[4:7], s{S_OFS} offen", f"buffer_store_dwordx4 {vr(P+4,4)}, v2, s[4:7], s{S_OFS} offen offset:1024"])
    wait(ot)
    flag(0, 17)
    stamp("o flagged")
    k(f"s_cmp_ge_u32 s9, 14\ns_cbranch_scc1 {n}_idle")
    k(f"s_cmp_eq_u32 s30, 0\ns_cbranch_scc1 {n}_cs1")
    k.label(f"{n}_cs1b")

    def tail_order(first_ks, last_ks, mf, each=None):
        for x, i in enumerate((1, 2, 3, 0)):
            for ks in range(first_ks, last_ks + 1):
                mf(ks, i)
                if each: each()
                if x >= 1 and ks - first_ks >= 2:
                    prev = (1, 2, 3, 0)[x - 1]
                    for q in ((0, 1) if ks - first_ks == 2 else (2, 3)):
                        k(f"ds_write_b128 v{8+prev}, {vr(ACC+16*prev+4*q,4)} offset:{q*1024}")
                elif x >= 1:
                    k("s_nop 4")

    def gemmB_epilogue(kind):
        RD = 104
        XOUT, ST = (X1, ST1) if kind == "op" else (X2, ST2)
        k(f"""
        s_add_u32 s14, s{S_XT}, {XOUT}
        s_add_u32 s19, s{S_STT}, {ST}
        s_waitcnt lgkmcnt(0)
        s_barrier
        """)
        for j_ in range(12):
            k(f"ds_read_b128 {vr(RD+4*j_,4)}, v8 offset:{j_*1024}")
        for i in range(8):
            k(f"v_pk_add_f32 {vr(RES+2*i,2)}, {vr(RES+2*i,2)}, {vr(ACC+2*i,2)}")
        for s_ in range(3):
            k(f"s_waitcnt lgkmcnt({8-4*s_})")
            for i in range(8):
                k(f"v_pk_add_f32 {vr(RES+2*i,2)}, {vr(RES+2*i,2)}, {vr(RD+16*s_+2*i,2)}")
        lg.all_done()
        PP = 80
        for i in range(8):
            k(f"v_cvt_pk_bf16_f32 v{PP+i}, v{RES+2*i}, v{RES+2*i+1}")
        if kind == "f2":
            k(f"s_cmp_eq_u32 s30, 1\ns_cbranch_scc1 {n}_final")
        hstore([f"buffer_store_dwordx4 {vr(PP,4)}, v2, s[4:7], s14 offen", f"buffer_store_dwordx4 {vr(PP+4,4)}, v2, s[4:7], s14 offen offset:1024"])
        S1, S2 = RD, RD + 2
        k(f"v_pk_add_f32 {vr(S1,2)}, {vr(RES,2)}, {vr(RES+2,2)}")
        k(f"v_pk_mul_f32 {vr(S2,2)}, {vr(RES,2)}, {vr(RES,2)}")
        k(f"v_pk_fma_f32 {vr(S2,2)}, {vr(RES+2,2)}, {vr(RES+2,2)}, {vr(S2,2)}")
        for i in range(2, 8):
            k(f"v_pk_add_f32 {vr(S1,2)}, {vr(S1,2)}, {vr(RES+2*i,2)}")
            k(f"v_pk_fma_f32 {vr(S2,2)}, {vr(RES+2*i,2)}, {vr(RES+2*i,2)}, {vr(S2,2)}")
        k(f"""
        v_add_f32 v{S1}, v{S1}, v{S1+1}
        v_add_f32 v{S2}, v{S2}, v{S2+1}
        s_nop 1
        v_permlane32_swap_b32 v{S1}, v{S2}
        v_add_f32 v{S1}, v{S1}, v{S2}
        """)
        return hstore([f"buffer_store_dword v{S1}, v4, s[4:7], s19 offen"])

    poll(0, 3)
    stamp("o ready")
    at = {}
    for ks in range(8):
        if ks == 4: k("s_add_u32 s11, s11, 4096\ns_add_u32 s12, s12, 4096")
        vm.issue(f"buffer_load_dwordx4 {ar(8*ks,4)}, v2, s[4:7], s11 offen offset:{(ks%4)*1024} {SC}")
        at[ks] = vm.issue(f"buffer_load_dwordx4 {ar(8*ks+4,4)}, v2, s[4:7], s12 offen offset:{(ks%4)*1024} {SC}")
    w2n = [W2A_ATT, 0]
    def w2a_load():
        w2n[1] += 1
        if w2n[0] >= 28 or w2n[1] <= 4: return
        for l in w2a_lines(w2n[0]):
            if l.startswith("buffer"): vm.issue(l)
            else: k(l)
        w2n[0] += 1
    def op_mf(ks, i):
        nu, rho = i // 2, i % 2
        acc = vr(ACC + 16*i, 16)
        wait(at[ks])
        k(f"{MF} {acc}, {ar(OPW+8*ks+4*nu,4)}, {ar(8*ks+4*rho,4)}, {'0' if ks == 0 else acc}")
    for ks in range(4):
        for i in range(4): op_mf(ks, i)
    k("s_barrier")
    tail_order(4, 7, op_mf, w2a_load)
    assert w2n[0] == 28
    stamp("op mfma done")
    xs = gemmB_epilogue("op")
    xa = lambda ks: ar(4*ks, 4)
    cst = {}
    def cs1_load(t):
        def f():
            if t == 0: k(f"s_lshl_b32 s16, s2, 11\ns_add_u32 s16, s16, {CSW}\nv_lshlrev_b32 v13, 3, v1")
            cst[0] = vm.issue(f"buffer_load_dwordx2 {vr(CS1+2*t,2)}, v13, s[4:7], s16 offen offset:{t*512} {SC}")
        return f
    xt, side, first, e = x_stream(X1, ST1, xa, [cs1_load(t) for t in range(4)])
    k(f"v_mov_b32 v{TR1}, v{TRP}")
    f1off = lambda ks, t: (ks*2048 + (t % 2)*512, ks*2048 + (t % 2)*512 + 1024, TR1, TR1)
    seq1 = [(ks, t) for ks in range(28) for t in (0, 1)]
    rd1 = preread(seq1, f1off)
    wait(xs)
    flag(1, 18)
    stamp("x1 flagged")
    poll(1, 0)
    stamp("x1 ready")
    run(first)
    side.setdefault(52, []).extend([f"s_add_u32 s19, s{S_HFS}, {56*1024}", f"s_add_u32 s27, s{S_W2}, {56*2048}"])
    def f1_mf(i, ks, t, wf, xf, init=True):
        acc = vr(ACC + 16*t, 16)
        k(f"{MF} {acc}, {wf}, {xf}, {'0' if (ks == 0 and init) else acc}")
    gpass(seq1, f1off, xa, f1_mf, side, xt, rd1)
    stamp("f1 pass1 done")
    k(f"v_add_u32 v{TR1}, {56*1024}, v{TR1}")
    wait(cst[0])
    def corr(t, cin):
        acc = vr(ACC + 16*t, 16)
        k(f"{MF8} {acc}, {vr(CS1+2*t,2)}, {vr(MUF,2)}, {acc if cin else '0'}")
    corr(2, False); corr(3, False)
    seq2 = [(ks, t) for ks in range(28) for t in (2, 3)]
    rd2 = preread(seq2, f1off)
    corr(0, True); corr(1, True)
    side = {}
    hs = {}
    def f1_ep(t, pk):
        a = ACC + 16*t
        L = []
        if pk: L += [f"v_pk_mul_f32 {vr(a+2*i,2)}, {vr(a+2*i,2)}, {vr(RSTD,2)} op_sel_hi:[1,0]" for i in range(8)]
        else: L += [f"v_mul_f32 v{a+i}, v{RSTD}, v{a+i}" for i in range(16)]
        L += [f"v_cvt_pk_bf16_f32 v{a+i}, v{a+2*i}, v{a+2*i+1}" for i in range(8)]
        L += [f"v_pk_max_i16 v{a+i}, v{a+i}, 0" for i in range(8)]
        sb = S_HFS if t < 2 else 19
        def st_():
            hs[t] = hstore([f"buffer_store_dwordx4 {vr(a,4)}, v2, s[4:7], s{sb} offen offset:{(t%2)*2048}",
                            f"buffer_store_dwordx4 {vr(a+4,4)}, v2, s[4:7], s{sb} offen offset:{(t%2)*2048+1024}"], S_HSLOW)
        L.append(st_)
        return L
    items = f1_ep(0, False) + f1_ep(1, False)
    i_ = 3
    while items:
        c_ = 3 if i_ % 2 == 0 else 2
        side.setdefault(i_, []).extend(items[:c_]); items = items[c_:]; i_ += 1
    def w2b_load(ks):
        def f():
            kk, nu = ks // 2, ks % 2
            if ks and ks % 4 == 0: k("s_add_u32 s27, s27, 4096")
            vm.issue(f"buffer_load_dwordx4 {ar(4*ks,4)}, v{6+nu}, s[4:7], s27 offen offset:{(kk%2)*2048} {SC}")
        return f
    for ks in range(28): side.setdefault(2*ks + 1, []).insert(0, w2b_load(ks))
    def sig_a():
        wait(hs[1]); flag(2, 17)
    side.setdefault(42, []).append(sig_a)
    def poll_a(): pl[2] = vm.issue(poll_line(2, VBH))
    side.setdefault(50, []).append(poll_a)
    side.setdefault(52, []).extend([f"s_mov_b32 s11, s{S_HA0}", f"s_mov_b32 s12, s{S_HA1}"])
    gpass(seq2, f1off, xa, lambda i, ks, t, wf, xf: f1_mf(i, ks, t, wf, xf, False), side, None, rd2)
    stamp("ffn1 mfma done")
    poll_check(pl[2], [poll_line(2, VBH)])
    AR = 96
    at = {}
    def aload(ks):
        m_ = ks % 14
        if ks == 14: k(f"s_add_u32 s11, s11, {56*1024 - 12*1024}\ns_add_u32 s12, s12, {56*1024 - 12*1024}")
        if m_ and m_ % 4 == 0: k("s_add_u32 s11, s11, 4096\ns_add_u32 s12, s12, 4096")
        b = AR + 8*m_
        vm.issue(f"buffer_load_dwordx4 {vr(b,4)}, v2, s[4:7], s11 offen offset:{(m_%4)*1024} {SC}")
        at[ks] = vm.issue(f"buffer_load_dwordx4 {vr(b+4,4)}, v2, s[4:7], s12 offen offset:{(m_%4)*1024} {SC}")
    for ks in range(4): aload(ks)
    na = 4
    for i, it in enumerate(f1_ep(2, True) + f1_ep(3, True)):
        run([it])
        if i % 10 == 9 and na < 8: aload(na); na += 1
    def qkv_dma_setup():
        k(f"""
        s_mul_i32 s41, s3, {21*1024}
        s_add_u32 s40, s41, s{S_WQ}
        s_cmp_eq_u32 s30, 0
        s_cselect_b32 s40, s40, 0x7fffffff
        """)
    def qkv_dma3():
        k("s_mov_b32 m0, s41\ns_add_u32 s41, s41, 3072")
        for q in range(3): vm.issue(f"buffer_load_dwordx4 v2, s[4:7], s40 offen offset:{q*1024} {SC} lds")
        k("s_add_u32 s40, s40, 3072")
    def w2reg(ks, nu): return W2A + 8*ks + 4*nu if ks < 14 else 8*(ks-14) + 4*nu
    def f2_mf(ks, i):
        nu, rho = i // 2, i % 2
        acc = vr(ACC + 16*i, 16)
        wait(at[ks])
        k(f"{MF} {acc}, {ar(w2reg(ks,nu),4)}, {vr(AR+8*(ks%14)+4*rho,4)}, {'0' if ks == 0 else acc}")
    for ks in range(24):
        for i in range(4):
            f2_mf(ks, i)
            if i == 0 and na < 14: aload(na); na += 1
            if ks >= 8 and i in (1, 3) and na < 28 and na - 14 < ks: aload(na); na += 1
        if ks == 1:
            wait(hs[3]); flag(3, 17)
        if ks == 3: k("s_barrier"); qkv_dma_setup()
        if ks == 5: pl[3] = vm.issue(poll_line(3, VBH))
        if ks == 7:
            poll_check(pl[3], [poll_line(3, VBH)]); stamp("h.b ready")
        if ks >= 20: qkv_dma3()
    assert na == 28
    cnt = [0]
    def dma_tail():
        cnt[0] += 1
        if cnt[0] in (1, 5, 9): qkv_dma3()
    tail_order(24, 27, f2_mf, dma_tail)
    stamp("f2 mfma done")
    xs = gemmB_epilogue("f2")
    wait(xs)
    flag(4, 18)
    stamp("end")
    k.label(f"{n}_next")
    def flush():
        if not STAMP: return
        k(f"""
        s_waitcnt lgkmcnt(0)
        s_lshl_b32 s24, s2, 2
        s_add_u32 s24, s24, s3
        s_lshl_b32 s24, s24, 1
        s_add_u32 s24, s24, s30
        s_lshl_b32 s24, s24, 7
        s_add_u32 s24, s24, {TS}
        v_mov_b32 v14, 0
        """)
        for i in range(11):
            k(f"v_mov_b32 v15, s{80+2*i}\nbuffer_store_dword v15, v14, s[4:7], s24 offen offset:{4*i}")
    flush()
    poll(4, 0)
    stamp("start")
    k(f"""
    s_mov_b32 s30, 1
    s_mov_b32 s31, {KV + KVL}
    s_add_u32 s32, s32, 0x10000
    s_branch {n}_qkv1
    """)
    k.label(f"{n}_idle")
    flush()
    k(f"s_cmp_eq_u32 s30, 1\ns_cbranch_scc1 {n}_end")
    qkv_dma_setup()
    for c in range(7): qkv_dma3()
    k(f"s_branch {n}_next")
    k.label(f"{n}_cs1")
    k(f"""
    s_lshr_b32 s16, s3, 1
    s_mul_i32 s16, s16, {56*1024}
    s_and_b32 s19, s3, 1
    s_lshl_b32 s19, s19, 9
    s_add_u32 s16, s16, s19
    v_add_u32 v13, s16, v{TRP}
    v_mov_b32 v14, 0
    v_mov_b32 v15, 0
    v_mov_b32 v12, 0x3f803f80
    """)
    for ks in range(34):
        if ks < 28:
            k(f"ds_read_b64_tr_b16 {vr(112+4*(ks%8),2)}, v13 offset:{ks*2048}")
            k(f"ds_read_b64_tr_b16 {vr(112+4*(ks%8)+2,2)}, v13 offset:{ks*2048+1024}")
        if ks >= 6:
            k(f"s_waitcnt lgkmcnt({2*(min(ks, 27) - (ks - 6))})")
            for r in range(4): k(f"v_dot2c_f32_bf16 v{14+(r&1)}, v{112+4*((ks-6)%8)+r}, v12")
    k(f"""
    s_lshl_b32 s16, s2, 11
    s_lshl_b32 s19, s3, 9
    s_add_u32 s16, s16, s19
    s_add_u32 s16, s16, {CSW}
    v_add_f32 v14, v14, v15
    v_mov_b32 v15, v14
    v_lshlrev_b32 v13, 3, v1
    s_nop 0
    v_permlane32_swap_b32 v14, v15
    v_add_f32 v14, v14, v15
    """)
    run(split2(112, 14, 15))
    k(f"buffer_store_dwordx2 v[112:113], v13, s[4:7], s16 offen {SC}\ns_branch {n}_cs1b")
    k.label(f"{n}_final")
    PP = 80
    srd(36, POUT, 2048*448*2)
    k(f"""
    v_and_b32 v14, 31, v1
    v_mul_u32_u24 v14, 896, v14
    v_lshl_add_u32 v14, v5, 4, v14
    s_mul_i32 s14, s28, {32*896}
    s_lshl_b32 s15, s29, 6
    s_add_u32 s14, s14, s15
    v_permlane32_swap_b32 v{PP}, v{PP+2}
    v_permlane32_swap_b32 v{PP+1}, v{PP+3}
    v_permlane32_swap_b32 v{PP+4}, v{PP+6}
    v_permlane32_swap_b32 v{PP+5}, v{PP+7}
    buffer_store_dwordx4 {vr(PP,4)}, v14, s[36:39], s14 offen
    buffer_store_dwordx4 {vr(PP+4,4)}, v14, s[36:39], s14 offen offset:32
    """)
    if STAMP:
        k("s_waitcnt vmcnt(0)"); stamp("end")
    flush()
    k("s_endpgm")
    for o in ool:
        for l in o:
            if l.endswith(":"): k.label(l[:-1])
            else: k(l)
    k.label(f"{n}_slow")
    sm = lambda c: f"{MF} {vr(S,16)}, {ar(4*c,4)}, {vr(Q+24+4*c,4)}, {'0' if c == 0 else vr(S,16)}"
    allk = f"buffer_load_dwordx2 v[14:15], v{AD+5}, s[4:7], s19 offen {SC}"
    k(f"""
    s_lshl_b32 s19, s30, 13
    s_add_u32 s19, s19, s15
    s_mov_b32 s25, {SPIN}
    """)
    k.label(f"{n}_slow0")
    k(f"""
    {allk}
    s_sub_u32 s25, s25, 1
    s_cmp_eq_u32 s25, 0
    s_cbranch_scc1 {n}_slow0x
    s_waitcnt vmcnt(0)
    v_cmp_ne_u64 vcc, s[42:43], v[14:15]
    s_cbranch_vccnz {n}_slow0
    """)
    k.label(f"{n}_slow0x")
    k(f"""
    s_waitcnt vmcnt(0)
    s_lshl_b32 s19, s9, 18
    s_add_u32 s19, s19, s31
    s_mov_b32 s13, s19
    s_mov_b32 s26, 64
    v_mov_b32 v14, 0xff800000
    """)
    k.label(f"{n}_slow1")
    k(f"""
    buffer_load_dwordx4 a[0:3], v2, s[4:7], s19 offen {SC}
    buffer_load_dwordx4 a[4:7], v2, s[4:7], s19 offen offset:1024 {SC}
    s_add_u32 s19, s19, 4096
    s_waitcnt vmcnt(0)
    {sm(0)}
    {sm(1)}
    """)
    k.nop(12)
    for r in range(8):
        k(f"v_max3_f32 v14, v{S+2*r}, v{S+2*r+1}, v14")
    k(f"""
    s_sub_u32 s26, s26, 1
    s_cmp_lg_u32 s26, 0
    s_cbranch_scc1 {n}_slow1
    v_mov_b32 v15, v14
    s_nop 1
    v_permlane32_swap_b32 v14, v15
    v_max_f32 v14, v14, v15
    s_mov_b32 s19, s13
    s_mov_b32 s26, 64
    """)
    for r in range(16): k(f"v_mov_b32 v{OV+r}, 0")
    k.label(f"{n}_slow2")
    for j_ in range(4):
        k(f"buffer_load_dwordx4 {ar(4*j_,4)}, v2, s[4:7], s19 offen offset:{j_*1024} {SC}")
    k(f"""
    s_add_u32 s19, s19, 4096
    s_waitcnt vmcnt(0)
    {sm(0)}
    {sm(1)}
    """)
    k.nop(12)
    for r in range(16): k(f"v_sub_f32 v{S+r}, v{S+r}, v14")
    for r in range(16): k(f"v_exp_f32 v{S+r}, v{S+r}")
    k("s_nop 0")
    for r in range(8): k(f"v_cvt_pk_bf16_f32 v{P+r}, v{S+2*r}, v{S+2*r+1}")
    k("s_nop 1")
    for c in range(2): k(f"{MF} {vr(OV,16)}, {ar(8+4*c,4)}, {vr(P+4*c,4)}, {vr(OV,16)}")
    k(f"""
    s_sub_u32 s26, s26, 1
    s_cmp_lg_u32 s26, 0
    s_cbranch_scc1 {n}_slow2
    """)
    k.nop(12)
    k(f"""
    v_mov_b32 v12, v{OV+12}
    v_mov_b32 v13, v{OV+12}
    s_nop 1
    v_permlane32_swap_b32 v12, v13
    s_branch {n}_fin
    """)
    k.label(f"{n}_end")
    k("s_endpgm")
    return k

def build(path, aslist):
    kname = NAME + "_kernel"
    k = gen(kname)
    hdr = open("cdna_kernels/%s.s.ref" % NAME).read().split("; Override")[0]
    out = hdr
    if aslist: out += f"; @launch kernel={kname} grid=(256,1,1) block=(256,1,1) lds=163840\n"
    else: out += "; @launch grid=(256,1,1) block=(256,1,1) lds=163840\n"
    out += '.amdgcn_target "amdgcn-amd-amdhsa--gfx950"\n.text\n'
    errs = check_kernel(k)
    for e in errs: print("HAZARD", e)
    out += f".globl {k.name}\n.p2align 8\n.type {k.name},@function\n{k.name}:\n" + k.text() + "\n"
    out += f""".section .rodata,"a"
.p2align 6
.amdhsa_kernel {k.name}
  .amdhsa_next_free_vgpr 512
  .amdhsa_next_free_sgpr {102 if STAMP else 80}
  .amdhsa_accum_offset 256
  .amdhsa_group_segment_fixed_size 0
  .amdhsa_kernarg_size 72
  .amdhsa_user_sgpr_count 2
  .amdhsa_user_sgpr_kernarg_segment_ptr 1
  .amdhsa_system_sgpr_workgroup_id_x 1
.end_amdhsa_kernel
"""
    open(path, "w").write(out)
    if STAMP: open(path + ".names", "w").write("\n".join(SEL))
    print("wrote", path, len(out), "bytes; hazards:", len(errs))

if __name__ == "__main__":
    if len(sys.argv) > 1: build(sys.argv[1], True)
    else: build("cdna_kernels/%s.s" % NAME, False)
```

```python
import sys, math, os, struct
from asmlib import *

NAME = "interleave_layers__mha_block__dense_activation_relu__prompt"

W2F = 0x000000
WOF = 0x190000
CSW = 0x200000
FLK = 0x280000
FLG = 0x288000
X1  = 0x300000
X2  = 0x4C0000
ST1 = 0x680000
ST2 = 0x6C0000
OF  = 0x700000
HF  = 0x900000
KV  = 0x1000000
KVL = 0x400000
WQI = 0x1800000
TS  = 0x1980000
WS_USED = TS + 0x80000

QSCALE = (28 ** -0.5) * math.log2(math.e)
def f2u(x): return struct.unpack("<I", struct.pack("<f", x))[0]
env = lambda n_, d="0": os.environ.get(n_, d)
STAMP = env("STAMP") != "0"
CLK = "s_memtime" if env("STAMP") == "2" else "s_memrealtime"
NOFAST = env("NOFAST") == "1"
SC = "sc1"
RED_LDS = 114688
XS_LDS, XS_W, XS_SLOT, XS_RG = 86016, 19456, 4608, 1152
MF = "v_mfma_f32_32x32x16_bf16"
MF8 = "v_mfma_f32_32x32x8_bf16"
SPIN = 400000
SELS = {"a": ["start", "qkv first x", "qkv pass1 done", "qkv mfma done", "kv flagged", "kv ready", "att first kv", "att secA done", "att loop done", "o flagged", "end"],
        "b": ["start", "o flagged", "o ready", "op mfma done", "x1 flagged", "x1 ready", "f1 pass1 done", "ffn1 mfma done", "h.b ready", "f2 mfma done", "end"]}
SEL = SELS[env("SEL", "a")]
DATASC = env("DATASC") == "1"
W2A_ATT = int(env("W2A_ATT", "20"))

class Cnt:
    def __init__(self, k, name, mx): self.k = k; self.n = 0; self.done = 0; self.name = name; self.mx = mx
    def issue(self, line):
        self.k(line); self.n += 1; return self.n
    def need(self, tok):
        if tok is None or tok <= self.done: return ""
        c = self.n - tok
        assert c <= self.mx, (self.name, c)
        self.done = tok
        return f"{self.name}({c})"
    def all_done(self): self.done = self.n

def gen(kname):
    k = Kern(kname)
    n = "L"
    vm = Cnt(k, "vmcnt", 63)
    lg = Cnt(k, "lgkmcnt", 15)
    ool = []
    uid = [0]
    def wait(v=None, l=None):
        s = " ".join(x for x in (vm.need(v), lg.need(l)) if x)
        if s: k("s_waitcnt " + s)
    def run(items):
        for it in items:
            if callable(it): it()
            elif it: k(it)
    def stamp(name):
        if STAMP and name in SEL:
            idx = SEL.index(name)
            k(f"{CLK} s[{80+2*idx}:{81+2*idx}]")
    ACC, STV, RSTD = 16, 80, 12
    PKK, PKV = 64, 72
    XV = 96
    TR1, TR2, PT, D1, VBH, TRP, TAGV, PQ = 208, 209, 210, 211, 212, 213, 214, 216
    CSQ, CS1, MUF, RES = 224, 230, 238, 240
    BR = 112
    OPW, W2A = 64, 144
    PX, PWQ, PWO, PW1, PW2, POUT, PDBG = 48, 50, 52, 56, 58, 60, 62
    S_KVS, S_OFS, S_XT, S_STT, S_HFS, S_OA0, S_OA1, S_HA0, S_HA1, S_WO, S_W2, S_W1, S_XS, S_WQ, S_KVB, S_HSLOW = range(64, 80)
    DQ, DX = 240, 241
    XA0 = 242
    def srd(dst, ptr, size):
        k(f"s_mov_b32 s{dst}, s{ptr}\ns_mov_b32 s{dst+1}, s{ptr+1}\ns_mov_b32 s{dst+2}, {size}\ns_mov_b32 s{dst+3}, 0x20000")
    k(f"""
    s_cmp_ge_u32 s2, 256
    s_cbranch_scc1 {n}_end
    s_load_dwordx16 s[48:63], s[0:1], 0
    s_load_dwordx2 s[4:5], s[0:1], 64
    s_memrealtime s[42:43]
    v_lshrrev_b32 v3, 6, v0
    v_and_b32 v1, 63, v0
    s_mov_b32 s6, {WS_USED}
    v_readfirstlane_b32 s3, v3
    s_mov_b32 s7, 0x20000
    v_lshlrev_b32 v2, 4, v1
    s_lshr_b32 s9, s2, 3
    s_lshr_b32 s8, s9, 4
    s_and_b32 s9, s9, 15
    s_and_b32 s10, s2, 7
    s_lshl_b32 s10, s10, 1
    s_add_u32 s8, s8, s10
    s_lshl_b32 s10, s8, 2
    s_add_u32 s10, s10, s3
    v_lshrrev_b32 v14, 2, v1
    v_and_b32 v15, 3, v1
    v_mul_u32_u24 v{DQ}, 2688, v14
    v_lshl_add_u32 v{DQ}, v15, 4, v{DQ}
    v_lshrrev_b32 v12, 3, v1
    v_and_b32 v13, 7, v1
    v_xor_b32 v13, v13, v12
    v_mul_u32_u24 v{DX}, 896, v12
    v_lshl_add_u32 v{DX}, v13, 4, v{DX}
    s_mul_i32 s11, s10, {32*896}
    s_mul_i32 s40, s3, {16*2688}
    s_mul_i32 s12, s9, 56
    s_add_u32 s40, s40, s12
    s_lshl_b32 s41, s3, 10
    s_mul_i32 s26, s3, {XS_W}
    s_add_u32 s26, s26, {XS_LDS}
    s_mov_b32 s38, {2048*448*2}
    s_mov_b32 s39, 0x20000
    s_mov_b32 s46, {448*1344*2}
    s_mov_b32 s47, 0x20000
    s_waitcnt lgkmcnt(0)
    s_mov_b32 s36, s{PX}
    s_mov_b32 s37, s{PX+1}
    s_mov_b32 s44, s{PWQ}
    s_mov_b32 s45, s{PWQ+1}
    """)
    stamp("start")
    PART_COL = (896, 1792, 0)
    ct = {}
    def chunk0(c):
        k(f"s_add_u32 m0, s26, {(c % 4)*XS_SLOT}")
        for rg in range(4):
            k(f"s_add_u32 s19, s11, {c*128 + rg*(8*896 - XS_RG)}")
            vm.issue(f"buffer_load_dwordx4 v{DX}, s[36:39], s19 offen offset:{rg*XS_RG} lds")
        for p in range(3):
            k(f"s_add_u32 m0, s41, {p*28*1024 + c*4096}")
            k(f"s_add_u32 s19, s40, {PART_COL[p] + c*64*2688}")
            ct[c] = vm.issue(f"buffer_load_dwordx4 v{DQ}, s[44:47], s19 offen lds")
    for c in range(4): chunk0(c)
    k(f"""
    s_or_b32 s24, s2, s3
    s_cmp_lg_u32 s24, 0
    s_cbranch_scc1 {n}_notag
    s_and_b32 s42, s42, 0xfffffff0
    s_bitset1_b32 s43, 31
    v_mov_b32 v{TAGV}, s42
    v_mov_b32 v{TAGV+1}, s43
    s_mov_b32 s12, s{PDBG}
    s_mov_b32 s13, s{PDBG+1}
    s_mov_b32 s14, 256
    s_mov_b32 s15, 0x20000
    s_mov_b64 exec, 1
    buffer_store_dwordx2 {vr(TAGV,2)}, off, s[12:15], 0 sc0 sc1
    s_mov_b64 exec, -1
    """)
    k.label(f"{n}_notag")
    k(f"""
    v_lshrrev_b32 v5, 5, v1
    s_min_u32 s34, s9, 13
    s_cmp_ge_u32 s34, 7
    s_cselect_b32 s12, 1, 0
    s_mul_i32 s33, s12, 7
    s_sub_u32 s33, s34, s33
    s_lshl_b32 s13, s12, 1
    s_and_b32 s14, s3, 1
    s_add_u32 s14, s14, s13
    s_lshl_b32 s28, s8, 2
    s_add_u32 s28, s28, s14
    s_lshr_b32 s15, s3, 1
    s_lshl_b32 s29, s33, 1
    s_add_u32 s29, s29, s15
    s_lshl_b32 s17, s3, 7
    s_lshl_b32 s16, s9, 3
    s_add_u32 s17, s17, s16
    s_lshl_b32 s18, s14, 7
    s_lshl_b32 s16, s29, 3
    s_add_u32 s18, s18, s16
    s_lshl_b32 s15, s15, 10
    v_add_u32 v6, s15, v2
    v_xor_b32 v7, 0x400, v6
    v_lshlrev_b32 v4, 2, v1
    v_and_b32 v0, 15, v1
    v_min_u32 v0, 13, v0
    v_lshlrev_b32 v0, 3, v0
    s_lshl_b32 s16, s3, 7
    v_add_u32 v0, s16, v0
    v_and_b32 v3, 1, v14
    v_add_u32 v3, s13, v3
    v_lshlrev_b32 v3, 7, v3
    v_lshl_add_u32 v3, v15, 3, v3
    s_mul_i32 s16, s3, 7
    s_lshr_b32 s16, s16, 1
    s_lshl_b32 s16, s16, 3
    v_add_u32 v{VBH}, s16, v3
    s_lshl_b32 s16, s3, 5
    v_add_u32 v3, s16, v3
    s_mov_b32 s30, 0
    s_mov_b32 s31, {KV}
    s_lshl_b32 s32, s8, 12
    s_add_u32 s32, s32, {FLG}
    s_mov_b32 s35, 1
    s_mov_b32 s20, -1
    s_mov_b32 s21, 0
    s_mov_b32 s22, 0xf0000000
    s_mov_b32 s23, 0xf0000000
    v_and_b32 v12, 7, v14
    v_mul_u32_u24 v{D1}, 3584, v12
    v_lshl_add_u32 v{D1}, v5, 6, v{D1}
    v_lshl_add_u32 v{D1}, v15, 4, v{D1}
    v_mul_u32_u24 v{PQ}, 896, v12
    v_lshl_add_u32 v{PQ}, v5, 6, v{PQ}
    v_lshl_add_u32 v{PQ}, v15, 4, v{PQ}
    v_and_b32 v12, 3, v14
    v_lshlrev_b32 v12, 6, v12
    v_bfe_u32 v14, v1, 4, 1
    v_lshl_add_u32 v12, v14, 5, v12
    v_lshl_add_u32 v12, v15, 3, v12
    v_lshl_add_u32 v{TR1}, v5, 9, v12
    v_add_u32 v{TR2}, 256, v{TR1}
    v_lshl_add_u32 v{TRP}, v5, 8, v12
    v_bfe_u32 v12, v1, 3, 2
    v_mul_u32_u24 v12, {XS_RG}, v12
    v_and_b32 v13, 7, v1
    v_lshl_add_u32 v12, v13, 7, v12
    v_xor_b32 v13, v13, v5
    v_lshl_add_u32 v12, v13, 4, v12
    v_add_u32 v{XA0}, s26, v12
    v_xor_b32 v{XA0+1}, 32, v{XA0}
    v_xor_b32 v{XA0+2}, 64, v{XA0}
    v_xor_b32 v{XA0+3}, 0x60, v{XA0}
    s_lshl_b32 s12, s9, 6
    s_add_u32 s12, s12, s10
    s_lshl_b32 s{S_KVS}, s12, 12
    s_lshl_b32 s12, s10, 15
    s_lshl_b32 s13, s9, 11
    s_add_u32 s12, s12, s13
    s_add_u32 s{S_OFS}, s12, {OF}
    s_mul_i32 s12, s28, {28*1024}
    s_lshl_b32 s13, s29, 11
    s_add_u32 s{S_XT}, s12, s13
    s_lshl_b32 s12, s28, 12
    s_lshl_b32 s13, s29, 8
    s_add_u32 s{S_STT}, s12, s13
    s_mul_i32 s12, s10, {112*1024}
    s_lshl_b32 s13, s34, 12
    s_add_u32 s12, s12, s13
    s_add_u32 s{S_HFS}, s12, {HF}
    s_lshl_b32 s13, s3, 13
    s_add_u32 s13, s13, {OF}
    s_lshl_b32 s12, s28, 15
    s_add_u32 s{S_OA0}, s12, s13
    s_xor_b32 s12, s12, 0x8000
    s_add_u32 s{S_OA1}, s12, s13
    s_mul_i32 s13, s3, {14*1024}
    s_add_u32 s13, s13, {HF}
    s_mul_i32 s12, s28, {112*1024}
    s_add_u32 s{S_HA0}, s12, s13
    s_xor_b32 s12, s28, 1
    s_mul_i32 s12, s12, {112*1024}
    s_add_u32 s{S_HA1}, s12, s13
    s_lshl_b32 s12, s33, 16
    s_lshl_b32 s13, s3, 14
    s_add_u32 s12, s12, s13
    s_add_u32 s{S_WO}, s12, {WOF}
    s_mul_i32 s12, s33, {112*2048}
    s_mul_i32 s13, s3, {14*2048}
    s_add_u32 s12, s12, s13
    s_add_u32 s{S_W2}, s12, {W2F}
    s_lshr_b32 s12, s3, 1
    s_mul_i32 s12, s12, 1792
    s_lshl_b32 s13, s34, 7
    s_add_u32 s12, s12, s13
    s_and_b32 s13, s3, 1
    s_mul_i32 s13, s13, {28*8*3584}
    s_add_u32 s{S_W1}, s12, s13
    s_mul_i32 s{S_XS}, s10, {28*1024}
    s_mul_i32 s12, s9, {84*1024}
    s_add_u32 s{S_WQ}, s12, {WQI}
    s_lshl_b32 s12, s9, 18
    s_lshl_b32 s13, s3, 12
    s_add_u32 s{S_KVB}, s12, s13
    """)
    k(f"""
    v_and_b32 v12, 15, v1
    v_lshlrev_b32 v12, 7, v12
    v_add_u32 v{PT}, s{S_OFS}, v12
    s_add_u32 s12, s{S_XT}, {X1}
    v_add_u32 v13, s12, v12
    s_mov_b32 vcc_lo, 0xffff0000
    s_mov_b32 vcc_hi, 0
    v_cndmask_b32 v{PT}, v{PT}, v13, vcc
    s_add_u32 s12, s{S_XT}, {X2}
    v_add_u32 v13, s12, v12
    s_mov_b32 vcc_lo, 0
    s_mov_b32 vcc_hi, 0xffff
    v_cndmask_b32 v{PT}, v{PT}, v13, vcc
    s_add_u32 s12, s{S_STT}, {ST1}
    v_add_u32 v13, s12, v12
    s_mov_b32 vcc_hi, 0x30000
    v_cndmask_b32 v{PT}, v{PT}, v13, vcc
    s_add_u32 s12, s{S_STT}, {ST2 - 256}
    v_add_u32 v13, s12, v12
    s_mov_b32 vcc_hi, 0xc0000
    v_cndmask_b32 v{PT}, v{PT}, v13, vcc
    v_lshlrev_b32 v12, 2, v12
    s_lshl_b32 s13, s3, 7
    s_add_u32 s13, s13, s32
    s_sub_u32 s12, s13, {4*512}
    v_add_u32 v13, s12, v12
    s_mov_b32 vcc_hi, 0x01f00000
    v_cndmask_b32 v{PT}, v{PT}, v13, vcc
    s_add_u32 s12, s13, {0x10000 - 9*512}
    v_add_u32 v13, s12, v12
    s_mov_b32 vcc_hi, 0xfe000000
    v_cndmask_b32 v{PT}, v{PT}, v13, vcc
    """)
    if DATASC:
        k(f"v_mov_b32 v13, s13\ns_mov_b32 vcc_lo, -1\ns_mov_b32 vcc_hi, 0xfffff\nv_cndmask_b32 v{PT}, v{PT}, v13, vcc")
    for i in range(1, 4):
        k(f"s_xor_b32 s25, s3, {i}\ns_mul_i32 s25, s25, 12288\ns_add_u32 s25, s25, {RED_LDS + (i-1)*4096}\nv_add_u32 v{8+i}, s25, v2")
    k(f"s_mul_i32 s25, s3, 12288\ns_add_u32 s25, s25, {RED_LDS}\nv_add_u32 v8, s25, v2")

    def hstore(lines, sreg=35, data=True):
        if data and DATASC:
            for l in lines: tok = vm.issue(l + " " + SC)
            return tok
        uid[0] += 1
        u = uid[0]
        k(f"s_cmp_lg_u32 s{sreg}, 0\ns_cbranch_scc1 {n}_hs{u}")
        tok = None
        for l in lines: tok = vm.issue(l)
        k.label(f"{n}_hb{u}")
        ool.append([f"{n}_hs{u}:"] + [l + " " + SC for l in lines] + [f"s_branch {n}_hb{u}"])
        return tok
    def flag(phase, slot_s):
        k(f"s_add_u32 s24, s32, s{slot_s}\ns_mov_b64 exec, 1")
        hstore([f"buffer_store_dwordx2 {vr(TAGV,2)}, off, s[4:7], s24 offset:{phase*512}"], data=False)
        k("s_mov_b64 exec, -1")
    def poll_line(phase, va): return f"buffer_load_dwordx2 v[14:15], v{va}, s[4:7], s32 offen offset:{phase*512} {SC}"
    def poll_check(tok, lines, regs=(14,)):
        uid[0] += 1
        u = uid[0]
        wait(tok)
        def chk(lab):
            L = []
            for r in regs: L += [f"v_cmp_ne_u64 vcc, s[42:43], {vr(r,2)}", f"s_cbranch_vccnz {lab}"]
            return L
        run(chk(f"{n}_pl{u}"))
        k.label(f"{n}_pb{u}")
        ool.append([f"{n}_pl{u}:", f"s_mov_b32 s25, {SPIN}", f"{n}_pm{u}:"] + lines +
                   ["s_sub_u32 s25, s25, 1", "s_cmp_eq_u32 s25, 0", f"s_cbranch_scc1 {n}_pb{u}", "s_waitcnt vmcnt(0)"] + chk(f"{n}_pm{u}") + [f"s_branch {n}_pb{u}"])
    def poll(phase, va):
        l = poll_line(phase, va)
        poll_check(vm.issue(l), [l])
    def stats_sum():
        return [f"v_add_f32 v{STV+a}, v{STV+a}, v{STV+b}" for a, b in ((0,1),(2,3),(4,5),(6,7),(8,9),(10,11),(12,13),(0,2),(4,6),(8,10),(0,4),(8,12),(0,8))]
    def stats_fin():
        return [l.strip() for l in f"""
        v_mul_f32 v{STV}, {hex(f2u(1.0/448))}, v{STV}
        v_mov_b32 v{STV+1}, v{STV}
        s_nop 1
        v_permlane32_swap_b32 v{STV}, v{STV+1}
        v_fma_f32 v{STV+2}, -v{STV}, v{STV}, v{STV+1}
        v_max_f32 v{STV+2}, 0, v{STV+2}
        v_add_f32 v{STV+2}, {hex(f2u(1e-5))}, v{STV+2}
        v_rsq_f32 v{RSTD}, v{STV+2}
        v_sub_f32 v{STV}, 0, v{STV}
        v_cvt_pk_bf16_f32 v{STV+3}, v{STV}, v{STV}
        v_and_b32 v{STV+4}, 0xffff0000, v{STV+3}
        v_sub_f32 v{STV+4}, v{STV}, v{STV+4}
        v_cvt_pk_bf16_f32 v{STV+4}, v{STV+4}, v{STV+4}
        v_cndmask_b32 v{MUF}, 0, v{STV+3}, s[20:21]
        v_cndmask_b32 v{MUF+1}, 0, v{STV+4}, s[20:21]
        """.strip().split("\n")]
    def split2(dst, src, t):
        return [f"v_cvt_pk_bf16_f32 v{t}, v{src}, v{src}", f"v_and_b32 v{t}, 0xffff0000, v{t}", f"v_sub_f32 v{t}, v{src}, v{t}",
                f"v_cvt_pk_bf16_f32 v{dst}, v{src}, v{t}", f"v_mov_b32 v{dst+1}, v{dst}"]
    def spread(side, items, start, per):
        for i, it in enumerate(items):
            side.setdefault(start + i // per, []).append(it)
        return start + (len(items) + per - 1) // per
    def trread(dst_pref, dst, a1, a2, off1, off2):
        lg.issue(f"ds_read_b64_tr_b16 {vr(dst,2,dst_pref)}, v{a1} offset:{off1}")
        return lg.issue(f"ds_read_b64_tr_b16 {vr(dst+2,2,dst_pref)}, v{a2} offset:{off2}")
    bt = {}
    def bounce_w():
        k(f"s_lshl_b32 s16, s3, 8\ns_add_u32 s16, s16, {RED_LDS + 8192}\nv_add_u32 v14, s16, v4")
        bt[0] = lg.issue(f"ds_write_b32 v14, v{RSTD}")
        k("v_lshl_add_u32 v14, v5, 4, s16")
    def bounce_r():
        wait(None, bt[0])
        for q in range(4): bt[1] = lg.issue(f"ds_read_b128 {vr(STV+4*q,4)}, v14 offset:{32*q}")
    def qkv_mfma(t, wf, xf, cin, op=MF):
        acc = vr(ACC + 16*t, 16)
        a_, b_ = (xf, wf) if t == 2 else (wf, xf)
        k(f"{op} {acc}, {a_}, {b_}, {acc if cin else '0'}")

    CT = PKK
    k(f"""
    s_lshl_b32 s16, s3, 10
    v_add_u32 v14, s16, v{TR1}
    v_add_u32 v15, s16, v{TR2}
    v_add_u32 v{PQ+1}, {56*1024}, v14
    v_add_u32 v{PQ+2}, {56*1024}, v15
    v_mov_b32 v{STV+8}, 0x3f803f80
    v_and_b32 v13, 31, v1
    v_mul_u32_u24 v13, 896, v13
    v_lshl_add_u32 v13, v5, 4, v13
    """)
    for r in range(8): k(f"v_mov_b32 v{STV+r}, 0")
    late = {}
    STG = 3 * XS_SLOT
    def late_loads():
        k(f"""
        s_mul_i32 s12, s28, {32*896}
        s_lshl_b32 s13, s29, 6
        s_add_u32 s12, s12, s13
        """)
        vm.issue(f"buffer_load_dwordx4 v[16:19], v13, s[36:39], s12 offen")
        vm.issue(f"buffer_load_dwordx4 v[20:23], v13, s[36:39], s12 offen offset:32")
        srd(44, PDBG, 256)
        vm.issue(f"buffer_load_dwordx2 {vr(TAGV,2)}, off, s[44:47], 0 sc0 sc1")
        k(f"""
        s_cmp_ge_u32 s34, 7
        s_cselect_b32 s12, 64, 0
        s_add_u32 s12, s12, s10
        s_min_u32 s14, s12, 111
        s_and_b32 s15, s12, 31
        s_mul_i32 s13, s14, {16*896}
        s_lshl_b32 s16, s33, 7
        s_add_u32 s13, s13, s16
        s_add_u32 m0, s26, {STG}
        """)
        srd(36, PW2, 448*1792*2)
        vm.issue(f"buffer_load_dwordx4 v{PQ}, s[36:39], s13 offen lds")
        k(f"s_add_u32 s13, s13, {8*896 - 1024}")
        vm.issue(f"buffer_load_dwordx4 v{PQ}, s[36:39], s13 offen offset:1024 lds")
        k(f"""
        s_lshr_b32 s13, s15, 1
        s_mul_i32 s13, s13, {28*896}
        s_and_b32 s12, s15, 1
        s_mul_i32 s12, s12, {16*896}
        s_add_u32 s13, s13, s12
        s_add_u32 s13, s13, s16
        s_add_u32 m0, s26, {STG + 2048}
        """)
        srd(36, PWO, 448*448*2)
        vm.issue(f"buffer_load_dwordx4 v{PQ}, s[36:39], s13 offen lds")
        k(f"s_add_u32 s13, s13, {8*896 - 1024}")
        late["prep"] = vm.issue(f"buffer_load_dwordx4 v{PQ}, s[36:39], s13 offen offset:1024 lds")
    for c in range(7):
        wait(ct[c])
        for i in range(4):
            xr = lg.issue(f"ds_read_b128 {vr(XV+4*(4*c+i),4)}, v{XA0+i} offset:{(c%4)*XS_SLOT}")
        k("s_barrier")
        if c == 0: stamp("qkv first x")
        tk = [trread("v", CT + 4*p, 14 if p < 2 else PQ+1, 15 if p < 2 else PQ+2, (p % 2)*28*1024 + c*4096, (p % 2)*28*1024 + c*4096) for p in range(3)]
        rd = {}
        def rdf(f):
            i, p = f // 2, f % 2
            off = p*28*1024 + (4*c + i)*1024
            rd[f] = trread("a", BR + 4*f, TR1, TR2, off, off)
        for f in range(2): rdf(f)
        wait(None, xr)
        if c + 4 < 7: chunk0(c + 4)
        if c == 3: late_loads()
        for f in range(2, 4): rdf(f)
        for i in range(4):
            for j_ in range(4):
                x = XV + 4*(4*c+i) + j_
                k(f"v_dot2c_f32_bf16 v{STV + (j_ & 1)}, v{x}, v{STV+8}")
                k(f"v_dot2c_f32_bf16 v{STV + 2 + (j_ & 1)}, v{x}, v{x}")
        wait(None, rd[3])
        for f in range(4, 8): rdf(f)
        for j_ in range(4):
            for p in range(3):
                k(f"v_dot2c_f32_bf16 v{STV+4+p}, v{CT+4*p+j_}, v{STV+8}")
        for f in range(8):
            if f == 4: wait(None, rd[7])
            qkv_mfma(1 + f % 2, ar(BR + 4*f, 4), vr(XV + 4*(4*c + f//2), 4), not (c == 0 and f < 2))
    k(f"""
    s_lshl_b32 s12, s10, 10
    s_add_u32 s13, s10, 64
    s_min_u32 s13, s13, 83
    s_lshl_b32 s13, s13, 10
    v_add_u32 v14, s12, v2
    v_add_u32 v15, s13, v2
    ds_read_b128 a[8:11], v14
    ds_read_b128 a[12:15], v15
    """)
    for p in range(3):
        k(f"v_mov_b32 v{CT+p}, v{STV+4+p}")
    k(f"v_add_f32 v{STV}, v{STV}, v{STV+1}\nv_add_f32 v{STV+2}, v{STV+2}, v{STV+3}")
    for p in range(3):
        k(f"v_permlane32_swap_b32 v{CT+p}, v{STV+4+p}")
    k(f"v_permlane32_swap_b32 v{STV}, v{STV+2}")
    for p in range(3):
        k(f"v_add_f32 v{CT+p}, v{CT+p}, v{STV+4+p}")
    k(f"""
    v_add_f32 v{STV}, v{STV}, v{STV+2}
    v_add_u32 v13, s26, v2
    ds_write_b128 v13, {vr(CT,4)} offset:{4*XS_SLOT}
    v_add_u32 v13, s26, v{TRP}
    """)
    wait(late["prep"])
    for e_ in range(2): trread("a", 4*e_, 13, 13, STG + e_*512, STG + e_*512 + 1024)
    for e_ in range(2): trread("v", PQ + 4*e_, 13, 13, STG + 2048 + e_*512, STG + 2048 + e_*512 + 1024)
    run(stats_fin())
    k(f"""
    v_readfirstlane_b32 s43, v{TAGV+1}
    v_readfirstlane_b32 s42, v{TAGV}
    v_permlane32_swap_b32 v16, v18
    v_permlane32_swap_b32 v17, v19
    v_permlane32_swap_b32 v20, v22
    v_permlane32_swap_b32 v21, v23
    s_mul_i32 s12, s33, {112*2048}
    s_lshl_b32 s13, s14, 11
    s_add_u32 s12, s12, s13
    s_add_u32 s12, s12, {W2F}
    s_lshl_b32 s13, s33, 16
    s_lshl_b32 s16, s15, 11
    s_add_u32 s13, s13, s16
    s_add_u32 s13, s13, {WOF}
    s_bitcmp1_b32 s15, 0
    s_cselect_b32 s25, 0, -1
    s_mov_b32 s24, -1
    v_add_u32 v13, {XS_LDS + 4*XS_SLOT}, v2
    """)
    for i in range(8):
        k(f"v_lshlrev_b32 v{RES+2*i}, 16, v{16+i}")
        k(f"v_and_b32 v{RES+2*i+1}, 0xffff0000, v{16+i}")
    k("s_waitcnt lgkmcnt(0)\ns_barrier")
    lg.all_done()
    for w_ in range(4): lg.issue(f"ds_read_b128 {vr(16+4*w_,4)}, v13 offset:{w_*XS_W}")
    vm.issue(f"buffer_store_dwordx4 a[8:11], v14, s[4:7], s{S_WQ} offen {SC}")
    vm.issue(f"buffer_store_dwordx4 a[12:15], v15, s[4:7], s{S_WQ} offen {SC}")
    for e_ in range(2):
        for r in (2, 3): k(f"v_cndmask_b32 v{PQ+4*e_+r}, 0, v{PQ+4*e_+r}, s[24:25]")
    for e_ in range(2):
        vm.issue(f"buffer_store_dwordx4 {ar(4*e_,4)}, v2, s[4:7], s12 offen offset:{e_*1024} {SC}")
        vm.issue(f"buffer_store_dwordx4 {vr(PQ+4*e_,4)}, v2, s[4:7], s13 offen offset:{e_*1024} {SC}")
    k(f"s_cmp_eq_u32 s43, 0\ns_cbranch_scc1 {n}_tg")
    k.label(f"{n}_tb")
    ool.append([f"{n}_tg:", f"s_mov_b32 s16, {SPIN}",
                f"{n}_tm:", f"buffer_load_dwordx2 {vr(TAGV,2)}, off, s[44:47], 0 sc0 sc1",
                "s_sub_u32 s16, s16, 1", "s_cmp_eq_u32 s16, 0", f"s_cbranch_scc1 {n}_tb", "s_waitcnt vmcnt(0)",
                f"v_readfirstlane_b32 s43, v{TAGV+1}", f"v_readfirstlane_b32 s42, v{TAGV}", "s_cmp_eq_u32 s43, 0", f"s_cbranch_scc1 {n}_tm", f"s_branch {n}_tb"])
    bounce_w()
    k("s_waitcnt lgkmcnt(0)"); lg.all_done()
    for p in range(3):
        k(f"v_add_f32 v{16+p}, v{16+p}, v{20+p}\nv_add_f32 v{24+p}, v{24+p}, v{28+p}")
    bounce_r()
    for p, t in enumerate((1, 2, 0)):
        k(f"v_add_f32 v{16+p}, v{16+p}, v{24+p}")
        run(split2(CSQ + 2*t, 16 + p, 20 + p))
    k("s_waitcnt lgkmcnt(0)"); lg.all_done()
    k(f"s_branch {n}_qkv2")

    LA = 5
    def gpass(seq, frag_off, xreg, mf, side, xt=None, rd=None):
        rd = rd if rd is not None else {}
        def read(f):
            o1, o2, a1, a2 = frag_off(*seq[f])
            rd[f] = trread("a", BR + 4*(f % 8), a1, a2, o1, o2)
        nread = len(rd)
        while nread < LA: read(nread); nread += 1
        for i, (ks, t) in enumerate(seq):
            if nread < len(seq): read(nread); nread += 1
            if i % 2 == 0: wait(xt[ks] if xt else None, rd[i + 1])
            mf(i, ks, t, ar(BR + 4*(i % 8), 4), xreg(ks))
            run(side.get(i, []))
    def preread(seq, frag_off):
        rd = {}
        for f in range(LA):
            o1, o2, a1, a2 = frag_off(*seq[f]); rd[f] = trread("a", BR + 4*f, a1, a2, o1, o2)
        return rd

    def x_stream(XIN, ST, xreg, extra=()):
        k(f"s_add_u32 s11, s{S_XS}, {XIN}\ns_lshl_b32 s14, s10, 12\ns_add_u32 s14, s14, {ST}")
        xt = {}
        def xload(ks):
            def f():
                if ks and ks % 4 == 0: k("s_add_u32 s11, s11, 4096")
                xt[ks] = vm.issue(f"buffer_load_dwordx4 {xreg(ks)}, v2, s[4:7], s11 offen offset:{(ks%4)*1024} {SC}")
            return f
        side = {}
        stt = {}
        def sload(i):
            def f(): stt[i] = vm.issue(f"buffer_load_dword v{STV+i}, v4, s[4:7], s14 offen offset:{i*256} {SC}")
            return f
        for ks in range(8, 28): side.setdefault(2*(ks-8), []).append(xload(ks))
        for i in range(14): side.setdefault(2*i + 1, []).append(sload(i))
        for i, ex in enumerate(extra): side.setdefault(29 + 2*i, []).append(ex)
        side.setdefault(40, []).append(lambda: wait(stt[13]))
        e = spread(side, stats_sum() + stats_fin(), 40, 3)
        return xt, side, [xload(ks) for ks in range(8)], e

    k.label(f"{n}_qkv1")
    xv = lambda ks: vr(XV + 4*ks, 4)
    xt, side, first, e = x_stream(X2, ST2, xv)
    run(first)
    k(f"v_mov_b32 v{TR1}, v{TRP}\nv_add_u32 v{TR2}, 512, v{TRP}")
    wait(xt[0]); k("s_barrier")
    stamp("qkv first x")
    side.setdefault(e, []).append(bounce_w)
    side.setdefault(e + 3, []).append(bounce_r)
    gpass([(ks, t) for ks in range(28) for t in (1, 2)], lambda ks, t: ((t-1)*28*1024 + ks*1024,)*2 + (TR1, TR2), xv,
          lambda i, ks, t, wf, xf: qkv_mfma(t, wf, xf, ks > 0), side, xt)
    wait(None, lg.n)

    k.label(f"{n}_qkv2")
    stamp("qkv pass1 done")
    aq, ak, av = ACC, ACC + 16, ACC + 32
    k(f"v_add_u32 v{TR1}, {56*1024}, v{TR1}\nv_add_u32 v{TR2}, {56*1024}, v{TR2}")
    qkv_mfma(0, vr(CSQ, 2), vr(MUF, 2), False, MF8)
    seqq = [(ks, 0) for ks in range(28)]
    qoff = lambda ks, t: (ks*1024,)*2 + (TR1, TR2)
    rdq = preread(seqq, qoff)
    qkv_mfma(1, vr(CSQ+2, 2), vr(MUF, 2), True, MF8)
    k(f"""
    s_add_u32 s12, s{S_KVS}, s31
    v_mov_b32 v13, 0x3f803f80
    v_and_b32 v15, 31, v1
    v_cmp_eq_u32 vcc, 28, v15
    """)
    qkv_mfma(2, vr(CSQ+4, 2), vr(MUF, 2), True, MF8)
    k("s_nop 0\nv_cndmask_b32 v15, 0, v13, vcc")
    side = {}
    kvt = {}
    ep = [f"v_mul_f32 v{ak+i}, v{RSTD}, v{ak+i}" for i in range(16)]
    ep += [f"v_cvt_pk_bf16_f32 v{PKK+i}, v{ak+2*i}, v{ak+2*i+1}" for i in range(8)]
    ep += [f"v_cndmask_b32 v{PKK+6}, v13, v{PKK+6}, s[20:21]", f"v_cndmask_b32 v{PKK+7}, v13, v{PKK+7}, s[20:21]"]
    ep += [lambda: vm.issue(f"buffer_store_dwordx4 {vr(PKK,4)}, v2, s[4:7], s12 offen {SC}")]
    ep += [f"v_mul_f32 v{av+i}, v{STV+i}, v{av+i}" for i in range(4)]
    ep += [lambda: vm.issue(f"buffer_store_dwordx4 {vr(PKK+4,4)}, v2, s[4:7], s12 offen offset:1024 {SC}")]
    ep += [f"v_mul_f32 v{av+i}, v{STV+i}, v{av+i}" for i in range(4, 16)]
    ep += [f"v_cvt_pk_bf16_f32 v{PKV+i}, v{av+2*i}, v{av+2*i+1}" for i in range(8)]
    ep += [f"v_cndmask_b32 v{PKV+i}, v{PKV+i}, v15, s[22:23]" for i in range(4)]
    ep += [lambda: vm.issue(f"buffer_store_dwordx4 {vr(PKV,4)}, v2, s[4:7], s12 offen offset:2048 {SC}")]
    ep += [f"v_cndmask_b32 v{PKV+i}, v{PKV+i}, v15, s[22:23]" for i in range(4, 8)]
    def lastkv(): kvt[0] = vm.issue(f"buffer_store_dwordx4 {vr(PKV+4,4)}, v2, s[4:7], s12 offen offset:3072 {SC}")
    ep += [lastkv]
    e = spread(side, ep, 1, 3)
    misc = f"""v_mul_f32 v14, {hex(f2u(QSCALE))}, v{RSTD}
    s_lshl_b32 s16, s3, 11
    s_add_u32 s16, s16, {RED_LDS}
    v_add_u32 v13, s16, v2
    s_add_u32 s16, s{S_KVB}, s31
    s_add_u32 s44, s4, s16
    s_addc_u32 s45, s5, 0
    s_mov_b32 s46, 0x40000
    s_mov_b32 s47, 0x20000
    s_lshl_b32 s11, s8, 14
    s_mov_b32 s36, s{PW1}
    s_mov_b32 s37, s{PW1+1}
    s_mov_b32 s38, {448*1792*2}
    s_mov_b32 s39, 0x20000
    s_mov_b32 s40, s{S_W1}
    s_mul_i32 s41, s3, {28*1024}
    s_mov_b32 s13, s{S_WO}
    s_mov_b32 s27, s{S_W2}""".split("\n")
    spread(side, misc, e, 3)
    gpass(seqq, qoff, xv, lambda i, ks, t, wf, xf: qkv_mfma(0, wf, xf, True), side, None, rdq)
    stamp("qkv mfma done")
    AD = 80
    for i in range(4):
        k(f"v_add_u32 v{AD+i}, {i*(8*3584-1024)}, v{D1}")
    k(f"""
    v_lshlrev_b32 v{AD+5}, 3, v1
    v_and_b32 v{AD+4}, 0x78, v{AD+5}
    s_lshl_b32 s14, s30, 13
    s_lshl_b32 s15, s9, 9
    s_add_u32 s15, s15, {FLK}
    s_add_u32 s14, s14, s15
    s_lshl_b32 s19, s3, 7
    s_add_u32 s14, s14, s19
    """)
    for r in range(12, 16): k(f"v_cndmask_b32 v{aq+r}, 0, v{aq+r}, s[20:21]")
    for i in range(8):
        k(f"v_pk_mul_f32 {vr(aq+2*i,2)}, {vr(aq+2*i,2)}, {vr(14,2)} op_sel_hi:[1,0]")
    k(f"v_pk_mul_f32 {vr(MUF,2)}, {vr(aq,2)}, {vr(ak,2)}")
    for i in range(1, 8):
        k(f"v_pk_fma_f32 {vr(MUF,2)}, {vr(aq+2*i,2)}, {vr(ak+2*i,2)}, {vr(MUF,2)}")
    k(f"v_add_f32 v{MUF}, v{MUF}, v{MUF+1}")
    k(f"v_mov_b32 v{MUF+1}, v{MUF}")
    for i in range(4):
        k(f"v_cvt_pk_bf16_f32 v{PQ+i}, v{aq+2*i}, v{aq+2*i+1}")
    k(f"""
    v_permlane32_swap_b32 v{MUF}, v{MUF+1}
    ds_write_b128 v13, {vr(PQ,4)}
    v_add_f32 v{MUF}, v{MUF}, v{MUF+1}
    v_sub_f32 v{MUF}, 0, v{MUF}
    v_cndmask_b32 v{aq+12}, v{MUF}, v{aq+12}, s[20:21]
    """)
    for i in range(4, 8):
        k(f"v_cvt_pk_bf16_f32 v{PQ+i}, v{aq+2*i}, v{aq+2*i+1}")
    k(f"""
    ds_write_b128 v13, {vr(PQ+4,4)} offset:1024
    s_add_u32 s16, s33, 7
    s_cmp_ge_u32 s34, 7
    s_cselect_b32 s16, s33, s16
    s_lshl_b32 s16, s16, 9
    s_add_u32 s16, s16, {FLK}
    s_lshl_b32 s24, s8, 3
    s_add_u32 s24, s24, s14
    s_getreg_b32 s25, hwreg(HW_REG_XCC_ID, 0, 4)
    s_or_b32 s25, s25, s42
    v_mov_b32 v14, s25
    v_mov_b32 v15, s43
    s_lshl_b32 s25, s9, 3
    s_add_u32 s25, s25, s32
    s_waitcnt lgkmcnt(0)
    s_barrier
    """)
    lg.all_done()
    Q, OV, S, P, RED = 16, 48, 112, 144, 160
    OA = RED
    for i in range(4):
        k(f"v_xor_b32 v12, {(i^3)*2048}, v13" if i != 3 else "v_mov_b32 v12, v13")
        k(f"ds_read_b128 {vr(Q+8*i,4)}, v12")
        k(f"ds_read_b128 {vr(Q+8*i+4,4)}, v12 offset:1024")
    def kvflag():
        wait(kvt[0])
        k("s_mov_b64 exec, 1")
        vm.issue(f"buffer_store_dwordx2 {vr(TAGV,2)}, off, s[4:7], s24 {SC}")
        vm.issue(f"buffer_store_dwordx2 v[14:15], off, s[4:7], s25 offset:{5*512} {SC}")
        k("s_mov_b64 exec, -1")
        stamp("kv flagged")
    gather = f"buffer_load_dword v{AD+7}, v{PT}, s[4:7], 0 offen {SC}"
    k(f"""
    v_and_b32 v{AD+6}, 31, v1
    v_lshlrev_b32 v{AD+6}, 7, v{AD+6}
    v_mul_u32_u24 v12, {56*1024}, v5
    v_add_u32 v{AD+6}, v12, v{AD+6}
    """)
    kvflag()
    if env("X_NOPT") != "1" and env("X_NOEARLY") != "1": vm.issue(gather)
    k("s_waitcnt lgkmcnt(0)\ns_barrier")
    def kf(nn, c): return vr(PKK + 4*c, 4) if nn == 0 else ar((nn % 3)*16 + 4*c, 4)
    def vf(nn, c): return vr(PKV + 4*c, 4) if nn == 0 else ar((nn % 3)*16 + 8 + 4*c, 4)
    def oacc(i): return vr(OV, 16) if i == 3 else vr(OA + 16*i, 16)
    def smf(u, c):
        nn, i = u // 4, u % 4
        d = vr(S + 16*(u % 2), 16)
        return f"{MF} {d}, {kf(nn,c)}, {vr(Q+8*i+4*c,4)}, {'0' if c == 0 else d}"
    def pvmf(u, c):
        nn, i = u // 4, u % 4
        d = oacc(i)
        return f"{MF} {d}, {vf(nn,c)}, {vr(P+8*(u%2)+4*c,4)}, {'0' if (nn == 0 and c == 0) else d}"
    def kvl(nn, j_):
        return f"buffer_load_dwordx4 {ar((nn%3)*16+4*j_,4)}, v2, s[44:47], s11 offen offset:{j_*1024} {SC}"
    adv = ["s_add_u32 s11, s11, 16384", "s_and_b32 s11, s11, 0x3ffff"]
    def unit(u, m, slots, pre=()):
        sb = S + 16*(u % 2); pb = P + 8*(u % 2)
        ex = [f"v_exp_f32 v{sb+r}, v{sb+r}" for r in range(16)]
        cv = [f"v_cvt_pk_bf16_f32 v{pb+r}, v{sb+2*r}, v{sb+2*r+1}" for r in range(8)]
        grp = [[ex[0], ex[1], ex[2], ex[3], cv[0], ex[4]], [ex[5], cv[1], ex[6], ex[7], cv[2], ex[8]],
               [ex[9], cv[3], ex[10], ex[11], cv[4], ex[12]], [ex[13], ex[14], cv[5], ex[15], cv[6], cv[7]]]
        run(pre)
        for p in range(4):
            k(m[p])
            run(slots.get(p, []))
            run(grp[p])
    def std_m(u): return [smf(u+1, 0), smf(u+1, 1), pvmf(u-1, 0), pvmf(u-1, 1)]
    k(smf(0, 0)); k(smf(0, 1))
    k.nop(11)
    unit(0, [smf(1, 0), smf(1, 1), "", ""], {})
    unit(1, std_m(1), {})
    unit(2, std_m(2), {})
    kvp = f"buffer_load_dwordx2 v[14:15], v{AD+4}, s[4:7], s14 offen {SC}"
    pl = {}
    def kvpoll(): pl[0] = vm.issue(kvp)
    unit(3, ["", "", pvmf(2, 0), pvmf(2, 1)], {0: [kvpoll]})
    poll_check(pl[0], [kvp])
    stamp("kv ready")
    kt = {}
    for nn in (1, 2):
        run(adv)
        for j_ in range(4):
            t_ = vm.issue(kvl(nn, j_))
            if j_ == 1: kt[(nn, "k")] = t_
            kt[nn] = t_
    wp = [f"buffer_load_dwordx2 v[14:15], v{AD+5}, s[4:7], s15 offen {SC}", f"buffer_load_dwordx2 v[12:13], v{AD+5}, s[4:7], s16 offen {SC}"]
    vm.issue(wp[0]); pl[1] = vm.issue(wp[1])
    k(pvmf(3, 0)); k(pvmf(3, 1))
    wait(kt[(1, "k")])
    stamp("att first kv")
    k(smf(4, 0)); k(smf(4, 1))
    k.nop(11)
    def opw(idx):
        kk, nu = idx // 2, idx % 2
        def f():
            if idx and idx % 4 == 0: k("s_add_u32 s13, s13, 4096")
            vm.issue(f"buffer_load_dwordx4 {ar(OPW+8*kk+4*nu,4)}, v{6+nu}, s[4:7], s13 offen offset:{(kk%2)*2048} {SC}")
        return f
    def kvi(nn, j_):
        def f():
            if j_ == 0: run(adv)
            kt[nn] = vm.issue(kvl(nn, j_))
        return f
    oi = 0
    for u in range(4, 12):
        nn, i = u // 4, u % 4
        sl = {}
        if i < 2:
            sl[1] = [kvi(nn + 2, 2*i)]; sl[3] = [kvi(nn + 2, 2*i + 1)]
            if u >= 8:
                for p in (0, 2): sl[p] = [opw(oi)]; oi += 1
        else:
            for p in (0, 1, 3): sl[p] = [opw(oi)]; oi += 1
        m = std_m(u)
        if u == 4: m[2] = m[3] = ""
        pre = []
        if u == 5: pre = [lambda: wait(kt[1])]
        if u == 6: pre = [lambda: poll_check(pl[1], wp, regs=(14, 12))]
        if i == 3: pre = [lambda nn=nn: wait(kt[nn + 1])]
        unit(u, m, sl, pre)
    assert oi == 16
    k("s_mov_b32 s26, 3")
    stamp("att secA done")
    def dma_slots(sl, t, cnt):
        pos = [(4*t+2, 1), (4*t+2, 3), (4*t+3, 1), (4*t+3, 3)]
        for q in range(cnt):
            L = [f"buffer_load_dwordx4 v{AD+q}, s[36:39], s40 offen offset:{q*1024} lds"]
            if q == cnt - 1: L += [f"s_add_u32 s40, s40, {cnt*8*3584}", f"s_add_u32 s41, s41, {cnt*1024}"]
            sl[pos[q]] = (("dma",), L)
        sl[(4*t+2, 0)] = (None, ["s_mov_b32 m0, s41"])
    def kv_slots(sl, t, nn):
        sl[(4*t, 1)] = (("kv", t + 2), adv + [kvl(nn + 2, 0)])
        sl[(4*t, 3)] = (("kv", t + 2), [kvl(nn + 2, 1)])
        sl[(4*t+1, 1)] = (("kv", t + 2), [kvl(nn + 2, 2)])
        sl[(4*t+1, 3)] = (("kv", t + 2), [kvl(nn + 2, 3)])
    slL = {}
    for t in range(3):
        kv_slots(slL, t, 3 + t)
        dma_slots(slL, t, (4, 4, 1)[t])
    slT = {}
    for t in range(2): kv_slots(slT, t, 12 + t)
    dma_slots(slT, 0, 1)
    def w2a_lines(idx):
        kk, nu = idx // 2, idx % 2
        return (["s_add_u32 s27, s27, 4096"] if idx and idx % 4 == 0 else []) + \
               [f"buffer_load_dwordx4 {ar(W2A+8*kk+4*nu,4)}, v{6+nu}, s[4:7], s27 offen offset:{(kk%2)*2048} {SC}"]
    if env("X_NOPT") != "1":
        slT[(6, 1)] = (("pt",), [gather])
        if not DATASC: slT[(6, 3)] = (("pt",), [f"s_cmp_eq_u32 s30, 0", f"s_cselect_b32 s19, 0x7fffffff, s{S_HFS}", f"buffer_load_dword v{AD+7}, v{AD+6}, s[4:7], s19 offen {SC}"])
    slT[(7, 1)] = (("xid",), [f"buffer_load_dwordx2 v[14:15], v{AD+4}, s[4:7], s32 offen offset:{5*512} {SC}"])
    free = [(u, p) for u in range(14) for p in (2, 1, 3) if (u, p) not in slT]
    cntu = {}
    idx = 0
    for (u, p) in free:
        used = sum(1 for (a, b), v_ in slT.items() if a == u and v_[0])
        if idx < W2A_ATT and used < (3 if W2A_ATT > 17 else 2):
            slT[(u, p)] = (("w",), None, idx); idx += 1
    assert idx == W2A_ATT, idx
    order = sorted(pos for pos, v_ in slT.items() if v_[0] == ("w",))
    for i_, pos in enumerate(order): slT[pos] = (("w",), w2a_lines(i_))
    ops = [("kv", 4)] + [("x",)] * (vm.n - kt[4])
    wcnt = {}
    for it in range(4):
        sl = slL if it < 3 else slT
        for uu in range(12 if it < 3 else 16):
            t, i = uu // 4, uu % 4
            if i == 3 and not (it == 3 and t == 3):
                needt = 3 + 3*it + t + 1
                ix = max(x for x, o in enumerate(ops) if o == ("kv", needt))
                key = (it == 3, uu)
                wcnt[key] = min(wcnt.get(key, 63), len(ops) - 1 - ix)
            for p in range(4):
                if (uu, p) in sl and sl[(uu, p)][0]:
                    tag = sl[(uu, p)][0]
                    ops.append(("kv", 3 + 3*it + tag[1]) if tag[0] == "kv" else tag)
    k(".p2align 6")
    k.label(f"{n}_loop")
    for uu in range(12):
        u = 12 + uu
        slots = {p: list(slL[(uu, p)][1]) for p in range(4) if (uu, p) in slL}
        if uu == 11: slots.setdefault(3, []).extend(["s_sub_u32 s26, s26, 1", "s_cmp_lg_u32 s26, 0"])
        unit(u, std_m(u), slots, [f"s_waitcnt vmcnt({wcnt[(False, uu)]})"] if (False, uu) in wcnt else [])
    k(f"s_cbranch_scc1 {n}_loop")
    def owr(i, q): return f"ds_write_b128 v{8+(i^3)}, {vr(OA+16*i+4*q,4)} offset:{q*1024}"
    for uu in range(16):
        u = 48 + uu
        slots = {p: list(slT[(uu, p)][1]) for p in range(4) if (uu, p) in slT}
        pre = [f"s_waitcnt vmcnt({wcnt[(True, uu)]})"] if (True, uu) in wcnt else []
        m = std_m(u)
        if u == 61: m = [pvmf(60, 0), pvmf(60, 1), smf(62, 0), smf(62, 1)]
        if u == 62:
            m = [pvmf(61, 0), pvmf(61, 1), smf(63, 0), smf(63, 1)]; slots = {p: [owr(0, p)] for p in range(4)}; pre = ["s_nop 3"]
        if u == 63:
            m = [pvmf(62, 0), pvmf(62, 1), "", ""]; slots = {p: [owr(1, p)] for p in range(4)}; pre = ["s_nop 2"]
        unit(u, m, slots, pre)
    for q in range(2): k(owr(2, q))
    k(pvmf(63, 0)); k(pvmf(63, 1))
    for q in range(2, 4): k(owr(2, q))
    stamp("att loop done")
    k(f"""
    s_getreg_b32 s25, hwreg(HW_REG_XCC_ID, 0, 4)
    s_or_b32 s24, s25, s42
    s_mov_b32 s25, s43
    s_waitcnt vmcnt(0) lgkmcnt(0)
    s_barrier
    """)
    vm.all_done(); lg.all_done()
    for j_ in range(12):
        k(f"ds_read_b128 {vr(RED+4*j_,4)}, v8 offset:{j_*1024}")
    k(f"""
    v_cmp_ne_u64 vcc, s[24:25], v[14:15]
    s_mov_b32 s14, {hex(f2u(2.0**-40))}
    s_mov_b32 s16, {hex(f2u(2.0**40))}
    s_cmp_lg_u64 vcc, 0
    s_cselect_b32 s35, 1, {1 if NOFAST else 0}
    s_xor_b32 s{S_HSLOW}, s30, 1
    s_or_b32 s{S_HSLOW}, s{S_HSLOW}, s35
    """)
    for s_ in range(3):
        k(f"s_waitcnt lgkmcnt({8-4*s_})")
        for i in range(8):
            k(f"v_pk_add_f32 {vr(OV+2*i,2)}, {vr(OV+2*i,2)}, {vr(RED+16*s_+2*i,2)}")
    k(f"""
    v_mov_b32 v12, v{OV+12}
    v_mov_b32 v13, v{OV+12}
    s_mov_b32 s11, s{S_OA0}
    s_mov_b32 s12, s{S_OA1}
    v_permlane32_swap_b32 v12, v13
    v_cmp_lt_f32 vcc, s14, v13
    v_cmp_gt_f32 s[24:25], s16, v13
    s_and_b64 vcc, vcc, s[24:25]
    s_cmp_eq_u64 vcc, exec
    s_cbranch_scc0 {n}_slow
    """)
    k.label(f"{n}_fin")
    k(f"v_rcp_f32 v12, v13\ns_nop 0")
    for i in range(8):
        k(f"v_pk_mul_f32 {vr(OV+2*i,2)}, {vr(OV+2*i,2)}, {vr(12,2)} op_sel_hi:[1,0]")
    for i in range(8):
        k(f"v_cvt_pk_bf16_f32 v{P+i}, v{OV+2*i}, v{OV+2*i+1}")
    ot = hstore([f"buffer_store_dwordx4 {vr(P,4)}, v2, s[4:7], s{S_OFS} offen", f"buffer_store_dwordx4 {vr(P+4,4)}, v2, s[4:7], s{S_OFS} offen offset:1024"])
    wait(ot)
    flag(0, 17)
    stamp("o flagged")
    k(f"s_cmp_ge_u32 s9, 14\ns_cbranch_scc1 {n}_idle")
    k(f"s_cmp_eq_u32 s30, 0\ns_cbranch_scc1 {n}_cs1")
    k.label(f"{n}_cs1b")

    def tail_order(first_ks, last_ks, mf, each=None):
        for x, i in enumerate((1, 2, 3, 0)):
            for ks in range(first_ks, last_ks + 1):
                mf(ks, i)
                if each: each()
                if x >= 1 and ks - first_ks >= 2:
                    prev = (1, 2, 3, 0)[x - 1]
                    for q in ((0, 1) if ks - first_ks == 2 else (2, 3)):
                        k(f"ds_write_b128 v{8+prev}, {vr(ACC+16*prev+4*q,4)} offset:{q*1024}")
                elif x >= 1:
                    k("s_nop 4")

    def gemmB_epilogue(kind):
        RD = 104
        XOUT, ST = (X1, ST1) if kind == "op" else (X2, ST2)
        k(f"""
        s_add_u32 s14, s{S_XT}, {XOUT}
        s_add_u32 s19, s{S_STT}, {ST}
        s_waitcnt lgkmcnt(0)
        s_barrier
        """)
        for j_ in range(12):
            k(f"ds_read_b128 {vr(RD+4*j_,4)}, v8 offset:{j_*1024}")
        for i in range(8):
            k(f"v_pk_add_f32 {vr(RES+2*i,2)}, {vr(RES+2*i,2)}, {vr(ACC+2*i,2)}")
        for s_ in range(3):
            k(f"s_waitcnt lgkmcnt({8-4*s_})")
            for i in range(8):
                k(f"v_pk_add_f32 {vr(RES+2*i,2)}, {vr(RES+2*i,2)}, {vr(RD+16*s_+2*i,2)}")
        lg.all_done()
        PP = 80
        for i in range(8):
            k(f"v_cvt_pk_bf16_f32 v{PP+i}, v{RES+2*i}, v{RES+2*i+1}")
        if kind == "f2":
            k(f"s_cmp_eq_u32 s30, 1\ns_cbranch_scc1 {n}_final")
        hstore([f"buffer_store_dwordx4 {vr(PP,4)}, v2, s[4:7], s14 offen", f"buffer_store_dwordx4 {vr(PP+4,4)}, v2, s[4:7], s14 offen offset:1024"])
        S1, S2 = RD, RD + 2
        k(f"v_pk_add_f32 {vr(S1,2)}, {vr(RES,2)}, {vr(RES+2,2)}")
        k(f"v_pk_mul_f32 {vr(S2,2)}, {vr(RES,2)}, {vr(RES,2)}")
        k(f"v_pk_fma_f32 {vr(S2,2)}, {vr(RES+2,2)}, {vr(RES+2,2)}, {vr(S2,2)}")
        for i in range(2, 8):
            k(f"v_pk_add_f32 {vr(S1,2)}, {vr(S1,2)}, {vr(RES+2*i,2)}")
            k(f"v_pk_fma_f32 {vr(S2,2)}, {vr(RES+2*i,2)}, {vr(RES+2*i,2)}, {vr(S2,2)}")
        k(f"""
        v_add_f32 v{S1}, v{S1}, v{S1+1}
        v_add_f32 v{S2}, v{S2}, v{S2+1}
        s_nop 1
        v_permlane32_swap_b32 v{S1}, v{S2}
        v_add_f32 v{S1}, v{S1}, v{S2}
        """)
        return hstore([f"buffer_store_dword v{S1}, v4, s[4:7], s19 offen"])

    poll(0, 3)
    stamp("o ready")
    at = {}
    for ks in range(8):
        if ks == 4: k("s_add_u32 s11, s11, 4096\ns_add_u32 s12, s12, 4096")
        vm.issue(f"buffer_load_dwordx4 {ar(8*ks,4)}, v2, s[4:7], s11 offen offset:{(ks%4)*1024} {SC}")
        at[ks] = vm.issue(f"buffer_load_dwordx4 {ar(8*ks+4,4)}, v2, s[4:7], s12 offen offset:{(ks%4)*1024} {SC}")
    w2n = [W2A_ATT, 0]
    def w2a_load():
        w2n[1] += 1
        if w2n[0] >= 28 or w2n[1] <= 4: return
        for l in w2a_lines(w2n[0]):
            if l.startswith("buffer"): vm.issue(l)
            else: k(l)
        w2n[0] += 1
    def op_mf(ks, i):
        nu, rho = i // 2, i % 2
        acc = vr(ACC + 16*i, 16)
        wait(at[ks])
        k(f"{MF} {acc}, {ar(OPW+8*ks+4*nu,4)}, {ar(8*ks+4*rho,4)}, {'0' if ks == 0 else acc}")
    for ks in range(4):
        for i in range(4): op_mf(ks, i)
    k("s_barrier")
    tail_order(4, 7, op_mf, w2a_load)
    assert w2n[0] == 28
    stamp("op mfma done")
    xs = gemmB_epilogue("op")
    xa = lambda ks: ar(4*ks, 4)
    cst = {}
    def cs1_load(t):
        def f():
            if t == 0: k(f"s_lshl_b32 s16, s2, 11\ns_add_u32 s16, s16, {CSW}\nv_lshlrev_b32 v13, 3, v1")
            cst[0] = vm.issue(f"buffer_load_dwordx2 {vr(CS1+2*t,2)}, v13, s[4:7], s16 offen offset:{t*512} {SC}")
        return f
    xt, side, first, e = x_stream(X1, ST1, xa, [cs1_load(t) for t in range(4)])
    k(f"v_mov_b32 v{TR1}, v{TRP}")
    f1off = lambda ks, t: (ks*2048 + (t % 2)*512, ks*2048 + (t % 2)*512 + 1024, TR1, TR1)
    seq1 = [(ks, t) for ks in range(28) for t in (0, 1)]
    rd1 = preread(seq1, f1off)
    wait(xs)
    flag(1, 18)
    stamp("x1 flagged")
    poll(1, 0)
    stamp("x1 ready")
    run(first)
    side.setdefault(52, []).extend([f"s_add_u32 s19, s{S_HFS}, {56*1024}", f"s_add_u32 s27, s{S_W2}, {56*2048}"])
    def f1_mf(i, ks, t, wf, xf, init=True):
        acc = vr(ACC + 16*t, 16)
        k(f"{MF} {acc}, {wf}, {xf}, {'0' if (ks == 0 and init) else acc}")
    gpass(seq1, f1off, xa, f1_mf, side, xt, rd1)
    stamp("f1 pass1 done")
    k(f"v_add_u32 v{TR1}, {56*1024}, v{TR1}")
    wait(cst[0])
    def corr(t, cin):
        acc = vr(ACC + 16*t, 16)
        k(f"{MF8} {acc}, {vr(CS1+2*t,2)}, {vr(MUF,2)}, {acc if cin else '0'}")
    corr(2, False); corr(3, False)
    seq2 = [(ks, t) for ks in range(28) for t in (2, 3)]
    rd2 = preread(seq2, f1off)
    corr(0, True); corr(1, True)
    side = {}
    hs = {}
    def f1_ep(t, pk):
        a = ACC + 16*t
        L = []
        if pk: L += [f"v_pk_mul_f32 {vr(a+2*i,2)}, {vr(a+2*i,2)}, {vr(RSTD,2)} op_sel_hi:[1,0]" for i in range(8)]
        else: L += [f"v_mul_f32 v{a+i}, v{RSTD}, v{a+i}" for i in range(16)]
        L += [f"v_cvt_pk_bf16_f32 v{a+i}, v{a+2*i}, v{a+2*i+1}" for i in range(8)]
        L += [f"v_pk_max_i16 v{a+i}, v{a+i}, 0" for i in range(8)]
        sb = S_HFS if t < 2 else 19
        def st_():
            hs[t] = hstore([f"buffer_store_dwordx4 {vr(a,4)}, v2, s[4:7], s{sb} offen offset:{(t%2)*2048}",
                            f"buffer_store_dwordx4 {vr(a+4,4)}, v2, s[4:7], s{sb} offen offset:{(t%2)*2048+1024}"], S_HSLOW)
        L.append(st_)
        return L
    items = f1_ep(0, False) + f1_ep(1, False)
    i_ = 3
    while items:
        c_ = 3 if i_ % 2 == 0 else 2
        side.setdefault(i_, []).extend(items[:c_]); items = items[c_:]; i_ += 1
    def w2b_load(ks):
        def f():
            kk, nu = ks // 2, ks % 2
            if ks and ks % 4 == 0: k("s_add_u32 s27, s27, 4096")
            vm.issue(f"buffer_load_dwordx4 {ar(4*ks,4)}, v{6+nu}, s[4:7], s27 offen offset:{(kk%2)*2048} {SC}")
        return f
    for ks in range(28): side.setdefault(2*ks + 1, []).insert(0, w2b_load(ks))
    def sig_a():
        wait(hs[1]); flag(2, 17)
    side.setdefault(42, []).append(sig_a)
    def poll_a(): pl[2] = vm.issue(poll_line(2, VBH))
    side.setdefault(50, []).append(poll_a)
    side.setdefault(52, []).extend([f"s_mov_b32 s11, s{S_HA0}", f"s_mov_b32 s12, s{S_HA1}"])
    gpass(seq2, f1off, xa, lambda i, ks, t, wf, xf: f1_mf(i, ks, t, wf, xf, False), side, None, rd2)
    stamp("ffn1 mfma done")
    poll_check(pl[2], [poll_line(2, VBH)])
    AR = 96
    at = {}
    def aload(ks):
        m_ = ks % 14
        if ks == 14: k(f"s_add_u32 s11, s11, {56*1024 - 12*1024}\ns_add_u32 s12, s12, {56*1024 - 12*1024}")
        if m_ and m_ % 4 == 0: k("s_add_u32 s11, s11, 4096\ns_add_u32 s12, s12, 4096")
        b = AR + 8*m_
        vm.issue(f"buffer_load_dwordx4 {vr(b,4)}, v2, s[4:7], s11 offen offset:{(m_%4)*1024} {SC}")
        at[ks] = vm.issue(f"buffer_load_dwordx4 {vr(b+4,4)}, v2, s[4:7], s12 offen offset:{(m_%4)*1024} {SC}")
    for ks in range(4): aload(ks)
    na = 4
    for i, it in enumerate(f1_ep(2, True) + f1_ep(3, True)):
        run([it])
        if i % 10 == 9 and na < 8: aload(na); na += 1
    def qkv_dma_setup():
        k(f"""
        s_mul_i32 s41, s3, {21*1024}
        s_add_u32 s40, s41, s{S_WQ}
        s_cmp_eq_u32 s30, 0
        s_cselect_b32 s40, s40, 0x7fffffff
        """)
    def qkv_dma3():
        k("s_mov_b32 m0, s41\ns_add_u32 s41, s41, 3072")
        for q in range(3): vm.issue(f"buffer_load_dwordx4 v2, s[4:7], s40 offen offset:{q*1024} {SC} lds")
        k("s_add_u32 s40, s40, 3072")
    def w2reg(ks, nu): return W2A + 8*ks + 4*nu if ks < 14 else 8*(ks-14) + 4*nu
    def f2_mf(ks, i):
        nu, rho = i // 2, i % 2
        acc = vr(ACC + 16*i, 16)
        wait(at[ks])
        k(f"{MF} {acc}, {ar(w2reg(ks,nu),4)}, {vr(AR+8*(ks%14)+4*rho,4)}, {'0' if ks == 0 else acc}")
    for ks in range(24):
        for i in range(4):
            f2_mf(ks, i)
            if i == 0 and na < 14: aload(na); na += 1
            if ks >= 8 and i in (1, 3) and na < 28 and na - 14 < ks: aload(na); na += 1
        if ks == 1:
            wait(hs[3]); flag(3, 17)
        if ks == 3: k("s_barrier"); qkv_dma_setup()
        if ks == 5: pl[3] = vm.issue(poll_line(3, VBH))
        if ks == 7:
            poll_check(pl[3], [poll_line(3, VBH)]); stamp("h.b ready")
        if ks >= 20: qkv_dma3()
    assert na == 28
    cnt = [0]
    def dma_tail():
        cnt[0] += 1
        if cnt[0] in (1, 5, 9): qkv_dma3()
    tail_order(24, 27, f2_mf, dma_tail)
    stamp("f2 mfma done")
    xs = gemmB_epilogue("f2")
    wait(xs)
    flag(4, 18)
    stamp("end")
    k.label(f"{n}_next")
    def flush():
        if not STAMP: return
        k(f"""
        s_waitcnt lgkmcnt(0)
        s_lshl_b32 s24, s2, 2
        s_add_u32 s24, s24, s3
        s_lshl_b32 s24, s24, 1
        s_add_u32 s24, s24, s30
        s_lshl_b32 s24, s24, 7
        s_add_u32 s24, s24, {TS}
        v_mov_b32 v14, 0
        """)
        for i in range(11):
            k(f"v_mov_b32 v15, s{80+2*i}\nbuffer_store_dword v15, v14, s[4:7], s24 offen offset:{4*i}")
    flush()
    poll(4, 0)
    stamp("start")
    k(f"""
    s_mov_b32 s30, 1
    s_mov_b32 s31, {KV + KVL}
    s_add_u32 s32, s32, 0x10000
    s_branch {n}_qkv1
    """)
    k.label(f"{n}_idle")
    flush()
    k(f"s_cmp_eq_u32 s30, 1\ns_cbranch_scc1 {n}_end")
    qkv_dma_setup()
    for c in range(7): qkv_dma3()
    k(f"s_branch {n}_next")
    k.label(f"{n}_cs1")
    k(f"""
    s_lshr_b32 s16, s3, 1
    s_mul_i32 s16, s16, {56*1024}
    s_and_b32 s19, s3, 1
    s_lshl_b32 s19, s19, 9
    s_add_u32 s16, s16, s19
    v_add_u32 v13, s16, v{TRP}
    v_mov_b32 v14, 0
    v_mov_b32 v15, 0
    v_mov_b32 v12, 0x3f803f80
    """)
    for ks in range(34):
        if ks < 28:
            k(f"ds_read_b64_tr_b16 {vr(112+4*(ks%8),2)}, v13 offset:{ks*2048}")
            k(f"ds_read_b64_tr_b16 {vr(112+4*(ks%8)+2,2)}, v13 offset:{ks*2048+1024}")
        if ks >= 6:
            k(f"s_waitcnt lgkmcnt({2*(min(ks, 27) - (ks - 6))})")
            for r in range(4): k(f"v_dot2c_f32_bf16 v{14+(r&1)}, v{112+4*((ks-6)%8)+r}, v12")
    k(f"""
    s_lshl_b32 s16, s2, 11
    s_lshl_b32 s19, s3, 9
    s_add_u32 s16, s16, s19
    s_add_u32 s16, s16, {CSW}
    v_add_f32 v14, v14, v15
    v_mov_b32 v15, v14
    v_lshlrev_b32 v13, 3, v1
    s_nop 0
    v_permlane32_swap_b32 v14, v15
    v_add_f32 v14, v14, v15
    """)
    run(split2(112, 14, 15))
    k(f"buffer_store_dwordx2 v[112:113], v13, s[4:7], s16 offen {SC}\ns_branch {n}_cs1b")
    k.label(f"{n}_final")
    PP = 80
    srd(36, POUT, 2048*448*2)
    k(f"""
    v_and_b32 v14, 31, v1
    v_mul_u32_u24 v14, 896, v14
    v_lshl_add_u32 v14, v5, 4, v14
    s_mul_i32 s14, s28, {32*896}
    s_lshl_b32 s15, s29, 6
    s_add_u32 s14, s14, s15
    v_permlane32_swap_b32 v{PP}, v{PP+2}
    v_permlane32_swap_b32 v{PP+1}, v{PP+3}
    v_permlane32_swap_b32 v{PP+4}, v{PP+6}
    v_permlane32_swap_b32 v{PP+5}, v{PP+7}
    buffer_store_dwordx4 {vr(PP,4)}, v14, s[36:39], s14 offen
    buffer_store_dwordx4 {vr(PP+4,4)}, v14, s[36:39], s14 offen offset:32
    """)
    if STAMP:
        k("s_waitcnt vmcnt(0)"); stamp("end")
    flush()
    k("s_endpgm")
    for o in ool:
        for l in o:
            if l.endswith(":"): k.label(l[:-1])
            else: k(l)
    k.label(f"{n}_slow")
    sm = lambda c: f"{MF} {vr(S,16)}, {ar(4*c,4)}, {vr(Q+24+4*c,4)}, {'0' if c == 0 else vr(S,16)}"
    allk = f"buffer_load_dwordx2 v[14:15], v{AD+5}, s[4:7], s19 offen {SC}"
    k(f"""
    s_lshl_b32 s19, s30, 13
    s_add_u32 s19, s19, s15
    s_mov_b32 s25, {SPIN}
    """)
    k.label(f"{n}_slow0")
    k(f"""
    {allk}
    s_sub_u32 s25, s25, 1
    s_cmp_eq_u32 s25, 0
    s_cbranch_scc1 {n}_slow0x
    s_waitcnt vmcnt(0)
    v_cmp_ne_u64 vcc, s[42:43], v[14:15]
    s_cbranch_vccnz {n}_slow0
    """)
    k.label(f"{n}_slow0x")
    k(f"""
    s_waitcnt vmcnt(0)
    s_lshl_b32 s19, s9, 18
    s_add_u32 s19, s19, s31
    s_mov_b32 s13, s19
    s_mov_b32 s26, 64
    v_mov_b32 v14, 0xff800000
    """)
    k.label(f"{n}_slow1")
    k(f"""
    buffer_load_dwordx4 a[0:3], v2, s[4:7], s19 offen {SC}
    buffer_load_dwordx4 a[4:7], v2, s[4:7], s19 offen offset:1024 {SC}
    s_add_u32 s19, s19, 4096
    s_waitcnt vmcnt(0)
    {sm(0)}
    {sm(1)}
    """)
    k.nop(12)
    for r in range(8):
        k(f"v_max3_f32 v14, v{S+2*r}, v{S+2*r+1}, v14")
    k(f"""
    s_sub_u32 s26, s26, 1
    s_cmp_lg_u32 s26, 0
    s_cbranch_scc1 {n}_slow1
    v_mov_b32 v15, v14
    s_nop 1
    v_permlane32_swap_b32 v14, v15
    v_max_f32 v14, v14, v15
    s_mov_b32 s19, s13
    s_mov_b32 s26, 64
    """)
    for r in range(16): k(f"v_mov_b32 v{OV+r}, 0")
    k.label(f"{n}_slow2")
    for j_ in range(4):
        k(f"buffer_load_dwordx4 {ar(4*j_,4)}, v2, s[4:7], s19 offen offset:{j_*1024} {SC}")
    k(f"""
    s_add_u32 s19, s19, 4096
    s_waitcnt vmcnt(0)
    {sm(0)}
    {sm(1)}
    """)
    k.nop(12)
    for r in range(16): k(f"v_sub_f32 v{S+r}, v{S+r}, v14")
    for r in range(16): k(f"v_exp_f32 v{S+r}, v{S+r}")
    k("s_nop 0")
    for r in range(8): k(f"v_cvt_pk_bf16_f32 v{P+r}, v{S+2*r}, v{S+2*r+1}")
    k("s_nop 1")
    for c in range(2): k(f"{MF} {vr(OV,16)}, {ar(8+4*c,4)}, {vr(P+4*c,4)}, {vr(OV,16)}")
    k(f"""
    s_sub_u32 s26, s26, 1
    s_cmp_lg_u32 s26, 0
    s_cbranch_scc1 {n}_slow2
    """)
    k.nop(12)
    k(f"""
    v_mov_b32 v12, v{OV+12}
    v_mov_b32 v13, v{OV+12}
    s_nop 1
    v_permlane32_swap_b32 v12, v13
    s_branch {n}_fin
    """)
    k.label(f"{n}_end")
    k("s_endpgm")
    return k

def build(path, aslist):
    kname = NAME + "_kernel"
    k = gen(kname)
    hdr = open("cdna_kernels/%s.s.ref" % NAME).read().split("; Override")[0]
    out = hdr
    if aslist: out += f"; @launch kernel={kname} grid=(256,1,1) block=(256,1,1) lds=163840\n"
    else: out += "; @launch grid=(256,1,1) block=(256,1,1) lds=163840\n"
    out += '.amdgcn_target "amdgcn-amd-amdhsa--gfx950"\n.text\n'
    errs = check_kernel(k)
    for e in errs: print("HAZARD", e)
    out += f".globl {k.name}\n.p2align 8\n.type {k.name},@function\n{k.name}:\n" + k.text() + "\n"
    out += f""".section .rodata,"a"
.p2align 6
.amdhsa_kernel {k.name}
  .amdhsa_next_free_vgpr 512
  .amdhsa_next_free_sgpr {102 if STAMP else 80}
  .amdhsa_accum_offset 256
  .amdhsa_group_segment_fixed_size 0
  .amdhsa_kernarg_size 72
  .amdhsa_user_sgpr_count 2
  .amdhsa_user_sgpr_kernarg_segment_ptr 1
  .amdhsa_system_sgpr_workgroup_id_x 1
.end_amdhsa_kernel
"""
    open(path, "w").write(out)
    if STAMP: open(path + ".names", "w").write("\n".join(SEL))
    print("wrote", path, len(out), "bytes; hazards:", len(errs))

if __name__ == "__main__":
    if len(sys.argv) > 1: build(sys.argv[1], True)
    else: build("cdna_kernels/%s.s" % NAME, False)
```

```python
import sys, math, os, struct
from asmlib import *

NAME = "interleave_layers__mha_block__dense_activation_relu__prompt"

W2F = 0x000000
WOF = 0x190000
CSW = 0x200000
FLK = 0x280000
FLG = 0x288000
X1  = 0x300000
X2  = 0x4C0000
ST1 = 0x680000
ST2 = 0x6C0000
OF  = 0x700000
HF  = 0x900000
KV  = 0x1000000
KVL = 0x400000
WQI = 0x1800000
TS  = 0x1980000
WS_USED = TS + 0x80000

QSCALE = (28 ** -0.5) * math.log2(math.e)
def f2u(x): return struct.unpack("<I", struct.pack("<f", x))[0]
env = lambda n_, d="0": os.environ.get(n_, d)
STAMP = env("STAMP") != "0"
CLK = "s_memtime" if env("STAMP") == "2" else "s_memrealtime"
NOFAST = env("NOFAST") == "1"
SC = "sc1"
RED_LDS = 114688
XS_LDS, XS_W, XS_SLOT, XS_RG = 86016, 19456, 4608, 1152
MF = "v_mfma_f32_32x32x16_bf16"
MF8 = "v_mfma_f32_32x32x8_bf16"
SPIN = 400000
SELS = {"a": ["start", "qkv first x", "qkv pass1 done", "qkv mfma done", "kv flagged", "kv ready", "att first kv", "att secA done", "att loop done", "o flagged", "end"],
        "b": ["start", "o flagged", "o ready", "op mfma done", "x1 flagged", "x1 ready", "f1 pass1 done", "ffn1 mfma done", "h.b ready", "f2 mfma done", "end"]}
SEL = SELS[env("SEL", "a")]
DATASC = env("DATASC") == "1"
W2A_ATT = int(env("W2A_ATT", "20"))

class Cnt:
    def __init__(self, k, name, mx): self.k = k; self.n = 0; self.done = 0; self.name = name; self.mx = mx
    def issue(self, line):
        self.k(line); self.n += 1; return self.n
    def need(self, tok):
        if tok is None or tok <= self.done: return ""
        c = self.n - tok
        assert c <= self.mx, (self.name, c)
        self.done = tok
        return f"{self.name}({c})"
    def all_done(self): self.done = self.n

def gen(kname):
    k = Kern(kname)
    n = "L"
    vm = Cnt(k, "vmcnt", 63)
    lg = Cnt(k, "lgkmcnt", 15)
    ool = []
    uid = [0]
    def wait(v=None, l=None):
        s = " ".join(x for x in (vm.need(v), lg.need(l)) if x)
        if s: k("s_waitcnt " + s)
    def run(items):
        for it in items:
            if callable(it): it()
            elif it: k(it)
    def stamp(name):
        if STAMP and name in SEL:
            idx = SEL.index(name)
            k(f"{CLK} s[{80+2*idx}:{81+2*idx}]")
    ACC, STV, RSTD = 16, 80, 12
    PKK, PKV = 64, 72
    XV = 96
    TR1, TR2, PT, D1, VBH, TRP, TAGV, PQ = 208, 209, 210, 211, 212, 213, 214, 216
    CSQ, CS1, MUF, RES = 224, 230, 238, 240
    BR = 112
    OPW, W2A = 64, 144
    PX, PWQ, PWO, PW1, PW2, POUT, PDBG = 48, 50, 52, 56, 58, 60, 62
    S_KVS, S_OFS, S_XT, S_STT, S_HFS, S_OA0, S_OA1, S_HA0, S_HA1, S_WO, S_W2, S_W1, S_XS, S_WQ, S_KVB, S_HSLOW = range(64, 80)
    DQ, DX = 240, 241
    XA0 = 242
    def srd(dst, ptr, size):
        k(f"s_mov_b32 s{dst}, s{ptr}\ns_mov_b32 s{dst+1}, s{ptr+1}\ns_mov_b32 s{dst+2}, {size}\ns_mov_b32 s{dst+3}, 0x20000")
    k(f"""
    s_cmp_ge_u32 s2, 256
    s_cbranch_scc1 {n}_end
    s_load_dwordx16 s[48:63], s[0:1], 0
    s_load_dwordx2 s[4:5], s[0:1], 64
    s_memrealtime s[42:43]
    v_lshrrev_b32 v3, 6, v0
    v_and_b32 v1, 63, v0
    s_mov_b32 s6, {WS_USED}
    v_readfirstlane_b32 s3, v3
    s_mov_b32 s7, 0x20000
    v_lshlrev_b32 v2, 4, v1
    s_lshr_b32 s9, s2, 3
    s_lshr_b32 s8, s9, 4
    s_and_b32 s9, s9, 15
    s_and_b32 s10, s2, 7
    s_lshl_b32 s10, s10, 1
    s_add_u32 s8, s8, s10
    s_lshl_b32 s10, s8, 2
    s_add_u32 s10, s10, s3
    v_lshrrev_b32 v14, 2, v1
    v_and_b32 v15, 3, v1
    v_mul_u32_u24 v{DQ}, 2688, v14
    v_lshl_add_u32 v{DQ}, v15, 4, v{DQ}
    v_lshrrev_b32 v12, 3, v1
    v_and_b32 v13, 7, v1
    v_xor_b32 v13, v13, v12
    v_mul_u32_u24 v{DX}, 896, v12
    v_lshl_add_u32 v{DX}, v13, 4, v{DX}
    s_mul_i32 s11, s10, {32*896}
    s_mul_i32 s40, s3, {16*2688}
    s_mul_i32 s12, s9, 56
    s_add_u32 s40, s40, s12
    s_lshl_b32 s41, s3, 10
    s_mul_i32 s26, s3, {XS_W}
    s_add_u32 s26, s26, {XS_LDS}
    s_mov_b32 s38, {2048*448*2}
    s_mov_b32 s39, 0x20000
    s_mov_b32 s46, {448*1344*2}
    s_mov_b32 s47, 0x20000
    s_waitcnt lgkmcnt(0)
    s_mov_b32 s36, s{PX}
    s_mov_b32 s37, s{PX+1}
    s_mov_b32 s44, s{PWQ}
    s_mov_b32 s45, s{PWQ+1}
    """)
    stamp("start")
    PART_COL = (896, 1792, 0)
    ct = {}
    def chunk0(c):
        k(f"s_add_u32 m0, s26, {(c % 4)*XS_SLOT}")
        for rg in range(4):
            k(f"s_add_u32 s19, s11, {c*128 + rg*(8*896 - XS_RG)}")
            vm.issue(f"buffer_load_dwordx4 v{DX}, s[36:39], s19 offen offset:{rg*XS_RG} lds")
        for p in range(3):
            k(f"s_add_u32 m0, s41, {p*28*1024 + c*4096}")
            k(f"s_add_u32 s19, s40, {PART_COL[p] + c*64*2688}")
            ct[c] = vm.issue(f"buffer_load_dwordx4 v{DQ}, s[44:47], s19 offen lds")
    for c in range(4): chunk0(c)
    k(f"""
    s_or_b32 s24, s2, s3
    s_cmp_lg_u32 s24, 0
    s_cbranch_scc1 {n}_notag
    s_and_b32 s42, s42, 0xfffffff0
    s_bitset1_b32 s43, 31
    v_mov_b32 v{TAGV}, s42
    v_mov_b32 v{TAGV+1}, s43
    s_mov_b32 s12, s{PDBG}
    s_mov_b32 s13, s{PDBG+1}
    s_mov_b32 s14, 256
    s_mov_b32 s15, 0x20000
    s_mov_b64 exec, 1
    buffer_store_dwordx2 {vr(TAGV,2)}, off, s[12:15], 0 sc0 sc1
    s_mov_b64 exec, -1
    """)
    k.label(f"{n}_notag")
    k(f"""
    v_lshrrev_b32 v5, 5, v1
    s_min_u32 s34, s9, 13
    s_cmp_ge_u32 s34, 7
    s_cselect_b32 s12, 1, 0
    s_mul_i32 s33, s12, 7
    s_sub_u32 s33, s34, s33
    s_lshl_b32 s13, s12, 1
    s_and_b32 s14, s3, 1
    s_add_u32 s14, s14, s13
    s_lshl_b32 s28, s8, 2
    s_add_u32 s28, s28, s14
    s_lshr_b32 s15, s3, 1
    s_lshl_b32 s29, s33, 1
    s_add_u32 s29, s29, s15
    s_lshl_b32 s17, s3, 7
    s_lshl_b32 s16, s9, 3
    s_add_u32 s17, s17, s16
    s_lshl_b32 s18, s14, 7
    s_lshl_b32 s16, s29, 3
    s_add_u32 s18, s18, s16
    s_lshl_b32 s15, s15, 10
    v_add_u32 v6, s15, v2
    v_xor_b32 v7, 0x400, v6
    v_lshlrev_b32 v4, 2, v1
    v_and_b32 v0, 15, v1
    v_min_u32 v0, 13, v0
    v_lshlrev_b32 v0, 3, v0
    s_lshl_b32 s16, s3, 7
    v_add_u32 v0, s16, v0
    v_and_b32 v3, 1, v14
    v_add_u32 v3, s13, v3
    v_lshlrev_b32 v3, 7, v3
    v_lshl_add_u32 v3, v15, 3, v3
    s_mul_i32 s16, s3, 7
    s_lshr_b32 s16, s16, 1
    s_lshl_b32 s16, s16, 3
    v_add_u32 v{VBH}, s16, v3
    s_lshl_b32 s16, s3, 5
    v_add_u32 v3, s16, v3
    s_mov_b32 s30, 0
    s_mov_b32 s31, {KV}
    s_lshl_b32 s32, s8, 12
    s_add_u32 s32, s32, {FLG}
    s_mov_b32 s35, 1
    s_mov_b32 s20, -1
    s_mov_b32 s21, 0
    s_mov_b32 s22, 0xf0000000
    s_mov_b32 s23, 0xf0000000
    v_and_b32 v12, 7, v14
    v_mul_u32_u24 v{D1}, 3584, v12
    v_lshl_add_u32 v{D1}, v5, 6, v{D1}
    v_lshl_add_u32 v{D1}, v15, 4, v{D1}
    v_mul_u32_u24 v{PQ}, 896, v12
    v_lshl_add_u32 v{PQ}, v5, 6, v{PQ}
    v_lshl_add_u32 v{PQ}, v15, 4, v{PQ}
    v_and_b32 v12, 3, v14
    v_lshlrev_b32 v12, 6, v12
    v_bfe_u32 v14, v1, 4, 1
    v_lshl_add_u32 v12, v14, 5, v12
    v_lshl_add_u32 v12, v15, 3, v12
    v_lshl_add_u32 v{TR1}, v5, 9, v12
    v_add_u32 v{TR2}, 256, v{TR1}
    v_lshl_add_u32 v{TRP}, v5, 8, v12
    v_bfe_u32 v12, v1, 3, 2
    v_mul_u32_u24 v12, {XS_RG}, v12
    v_and_b32 v13, 7, v1
    v_lshl_add_u32 v12, v13, 7, v12
    v_xor_b32 v13, v13, v5
    v_lshl_add_u32 v12, v13, 4, v12
    v_add_u32 v{XA0}, s26, v12
    v_xor_b32 v{XA0+1}, 32, v{XA0}
    v_xor_b32 v{XA0+2}, 64, v{XA0}
    v_xor_b32 v{XA0+3}, 0x60, v{XA0}
    s_lshl_b32 s12, s9, 6
    s_add_u32 s12, s12, s10
    s_lshl_b32 s{S_KVS}, s12, 12
    s_lshl_b32 s12, s10, 15
    s_lshl_b32 s13, s9, 11
    s_add_u32 s12, s12, s13
    s_add_u32 s{S_OFS}, s12, {OF}
    s_mul_i32 s12, s28, {28*1024}
    s_lshl_b32 s13, s29, 11
    s_add_u32 s{S_XT}, s12, s13
    s_lshl_b32 s12, s28, 12
    s_lshl_b32 s13, s29, 8
    s_add_u32 s{S_STT}, s12, s13
    s_mul_i32 s12, s10, {112*1024}
    s_lshl_b32 s13, s34, 12
    s_add_u32 s12, s12, s13
    s_add_u32 s{S_HFS}, s12, {HF}
    s_lshl_b32 s13, s3, 13
    s_add_u32 s13, s13, {OF}
    s_lshl_b32 s12, s28, 15
    s_add_u32 s{S_OA0}, s12, s13
    s_xor_b32 s12, s12, 0x8000
    s_add_u32 s{S_OA1}, s12, s13
    s_mul_i32 s13, s3, {14*1024}
    s_add_u32 s13, s13, {HF}
    s_mul_i32 s12, s28, {112*1024}
    s_add_u32 s{S_HA0}, s12, s13
    s_xor_b32 s12, s28, 1
    s_mul_i32 s12, s12, {112*1024}
    s_add_u32 s{S_HA1}, s12, s13
    s_lshl_b32 s12, s33, 16
    s_lshl_b32 s13, s3, 14
    s_add_u32 s12, s12, s13
    s_add_u32 s{S_WO}, s12, {WOF}
    s_mul_i32 s12, s33, {112*2048}
    s_mul_i32 s13, s3, {14*2048}
    s_add_u32 s12, s12, s13
    s_add_u32 s{S_W2}, s12, {W2F}
    s_lshr_b32 s12, s3, 1
    s_mul_i32 s12, s12, 1792
    s_lshl_b32 s13, s34, 7
    s_add_u32 s12, s12, s13
    s_and_b32 s13, s3, 1
    s_mul_i32 s13, s13, {28*8*3584}
    s_add_u32 s{S_W1}, s12, s13
    s_mul_i32 s{S_XS}, s10, {28*1024}
    s_mul_i32 s12, s9, {84*1024}
    s_add_u32 s{S_WQ}, s12, {WQI}
    s_lshl_b32 s12, s9, 18
    s_lshl_b32 s13, s3, 12
    s_add_u32 s{S_KVB}, s12, s13
    """)
    k(f"""
    v_and_b32 v12, 15, v1
    v_lshlrev_b32 v12, 7, v12
    v_add_u32 v{PT}, s{S_OFS}, v12
    s_add_u32 s12, s{S_XT}, {X1}
    v_add_u32 v13, s12, v12
    s_mov_b32 vcc_lo, 0xffff0000
    s_mov_b32 vcc_hi, 0
    v_cndmask_b32 v{PT}, v{PT}, v13, vcc
    s_add_u32 s12, s{S_XT}, {X2}
    v_add_u32 v13, s12, v12
    s_mov_b32 vcc_lo, 0
    s_mov_b32 vcc_hi, 0xffff
    v_cndmask_b32 v{PT}, v{PT}, v13, vcc
    s_add_u32 s12, s{S_STT}, {ST1}
    v_add_u32 v13, s12, v12
    s_mov_b32 vcc_hi, 0x30000
    v_cndmask_b32 v{PT}, v{PT}, v13, vcc
    s_add_u32 s12, s{S_STT}, {ST2 - 256}
    v_add_u32 v13, s12, v12
    s_mov_b32 vcc_hi, 0xc0000
    v_cndmask_b32 v{PT}, v{PT}, v13, vcc
    v_lshlrev_b32 v12, 2, v12
    s_lshl_b32 s13, s3, 7
    s_add_u32 s13, s13, s32
    s_sub_u32 s12, s13, {4*512}
    v_add_u32 v13, s12, v12
    s_mov_b32 vcc_hi, 0x01f00000
    v_cndmask_b32 v{PT}, v{PT}, v13, vcc
    s_add_u32 s12, s13, {0x10000 - 9*512}
    v_add_u32 v13, s12, v12
    s_mov_b32 vcc_hi, 0xfe000000
    v_cndmask_b32 v{PT}, v{PT}, v13, vcc
    """)
    if DATASC:
        k(f"v_mov_b32 v13, s13\ns_mov_b32 vcc_lo, -1\ns_mov_b32 vcc_hi, 0xfffff\nv_cndmask_b32 v{PT}, v{PT}, v13, vcc")
    for i in range(1, 4):
        k(f"s_xor_b32 s25, s3, {i}\ns_mul_i32 s25, s25, 12288\ns_add_u32 s25, s25, {RED_LDS + (i-1)*4096}\nv_add_u32 v{8+i}, s25, v2")
    k(f"s_mul_i32 s25, s3, 12288\ns_add_u32 s25, s25, {RED_LDS}\nv_add_u32 v8, s25, v2")

    def hstore(lines, sreg=35, data=True):
        if data and DATASC:
            for l in lines: tok = vm.issue(l + " " + SC)
            return tok
        uid[0] += 1
        u = uid[0]
        k(f"s_cmp_lg_u32 s{sreg}, 0\ns_cbranch_scc1 {n}_hs{u}")
        tok = None
        for l in lines: tok = vm.issue(l)
        k.label(f"{n}_hb{u}")
        ool.append([f"{n}_hs{u}:"] + [l + " " + SC for l in lines] + [f"s_branch {n}_hb{u}"])
        return tok
    def flag(phase, slot_s):
        k(f"s_add_u32 s24, s32, s{slot_s}\ns_mov_b64 exec, 1")
        hstore([f"buffer_store_dwordx2 {vr(TAGV,2)}, off, s[4:7], s24 offset:{phase*512}"], data=False)
        k("s_mov_b64 exec, -1")
    def poll_line(phase, va): return f"buffer_load_dwordx2 v[14:15], v{va}, s[4:7], s32 offen offset:{phase*512} {SC}"
    def poll_check(tok, lines, regs=(14,)):
        uid[0] += 1
        u = uid[0]
        wait(tok)
        def chk(lab):
            L = []
            for r in regs: L += [f"v_cmp_ne_u64 vcc, s[42:43], {vr(r,2)}", f"s_cbranch_vccnz {lab}"]
            return L
        run(chk(f"{n}_pl{u}"))
        k.label(f"{n}_pb{u}")
        ool.append([f"{n}_pl{u}:", f"s_mov_b32 s25, {SPIN}", f"{n}_pm{u}:"] + lines +
                   ["s_sub_u32 s25, s25, 1", "s_cmp_eq_u32 s25, 0", f"s_cbranch_scc1 {n}_pb{u}", "s_waitcnt vmcnt(0)"] + chk(f"{n}_pm{u}") + [f"s_branch {n}_pb{u}"])
    def poll(phase, va):
        l = poll_line(phase, va)
        poll_check(vm.issue(l), [l])
    def stats_sum():
        return [f"v_add_f32 v{STV+a}, v{STV+a}, v{STV+b}" for a, b in ((0,1),(2,3),(4,5),(6,7),(8,9),(10,11),(12,13),(0,2),(4,6),(8,10),(0,4),(8,12),(0,8))]
    def stats_fin():
        return [l.strip() for l in f"""
        v_mul_f32 v{STV}, {hex(f2u(1.0/448))}, v{STV}
        v_mov_b32 v{STV+1}, v{STV}
        s_nop 1
        v_permlane32_swap_b32 v{STV}, v{STV+1}
        v_fma_f32 v{STV+2}, -v{STV}, v{STV}, v{STV+1}
        v_max_f32 v{STV+2}, 0, v{STV+2}
        v_add_f32 v{STV+2}, {hex(f2u(1e-5))}, v{STV+2}
        v_rsq_f32 v{RSTD}, v{STV+2}
        v_sub_f32 v{STV}, 0, v{STV}
        v_cvt_pk_bf16_f32 v{STV+3}, v{STV}, v{STV}
        v_and_b32 v{STV+4}, 0xffff0000, v{STV+3}
        v_sub_f32 v{STV+4}, v{STV}, v{STV+4}
        v_cvt_pk_bf16_f32 v{STV+4}, v{STV+4}, v{STV+4}
        v_cndmask_b32 v{MUF}, 0, v{STV+3}, s[20:21]
        v_cndmask_b32 v{MUF+1}, 0, v{STV+4}, s[20:21]
        """.strip().split("\n")]
    def split2(dst, src, t):
        return [f"v_cvt_pk_bf16_f32 v{t}, v{src}, v{src}", f"v_and_b32 v{t}, 0xffff0000, v{t}", f"v_sub_f32 v{t}, v{src}, v{t}",
                f"v_cvt_pk_bf16_f32 v{dst}, v{src}, v{t}", f"v_mov_b32 v{dst+1}, v{dst}"]
    def spread(side, items, start, per):
        for i, it in enumerate(items):
            side.setdefault(start + i // per, []).append(it)
        return start + (len(items) + per - 1) // per
    def trread(dst_pref, dst, a1, a2, off1, off2):
        lg.issue(f"ds_read_b64_tr_b16 {vr(dst,2,dst_pref)}, v{a1} offset:{off1}")
        return lg.issue(f"ds_read_b64_tr_b16 {vr(dst+2,2,dst_pref)}, v{a2} offset:{off2}")
    bt = {}
    def bounce_w():
        k(f"s_lshl_b32 s16, s3, 8\ns_add_u32 s16, s16, {RED_LDS + 8192}\nv_add_u32 v14, s16, v4")
        bt[0] = lg.issue(f"ds_write_b32 v14, v{RSTD}")
        k("v_lshl_add_u32 v14, v5, 4, s16")
    def bounce_r():
        wait(None, bt[0])
        for q in range(4): bt[1] = lg.issue(f"ds_read_b128 {vr(STV+4*q,4)}, v14 offset:{32*q}")
    def qkv_mfma(t, wf, xf, cin, op=MF):
        acc = vr(ACC + 16*t, 16)
        a_, b_ = (xf, wf) if t == 2 else (wf, xf)
        k(f"{op} {acc}, {a_}, {b_}, {acc if cin else '0'}")

    CT = PKK
    k(f"""
    s_lshl_b32 s16, s3, 10
    v_add_u32 v14, s16, v{TR1}
    v_add_u32 v15, s16, v{TR2}
    v_add_u32 v{PQ+1}, {56*1024}, v14
    v_add_u32 v{PQ+2}, {56*1024}, v15
    v_mov_b32 v{STV+8}, 0x3f803f80
    v_and_b32 v13, 31, v1
    v_mul_u32_u24 v13, 896, v13
    v_lshl_add_u32 v13, v5, 4, v13
    """)
    for r in range(8): k(f"v_mov_b32 v{STV+r}, 0")
    late = {}
    STG = 3 * XS_SLOT
    def late_loads():
        k(f"""
        s_mul_i32 s12, s28, {32*896}
        s_lshl_b32 s13, s29, 6
        s_add_u32 s12, s12, s13
        """)
        vm.issue(f"buffer_load_dwordx4 v[16:19], v13, s[36:39], s12 offen")
        vm.issue(f"buffer_load_dwordx4 v[20:23], v13, s[36:39], s12 offen offset:32")
        srd(44, PDBG, 256)
        vm.issue(f"buffer_load_dwordx2 {vr(TAGV,2)}, off, s[44:47], 0 sc0 sc1")
        k(f"""
        s_cmp_ge_u32 s34, 7
        s_cselect_b32 s12, 64, 0
        s_add_u32 s12, s12, s10
        s_min_u32 s14, s12, 111
        s_and_b32 s15, s12, 31
        s_mul_i32 s13, s14, {16*896}
        s_lshl_b32 s16, s33, 7
        s_add_u32 s13, s13, s16
        s_add_u32 m0, s26, {STG}
        """)
        srd(36, PW2, 448*1792*2)
        vm.issue(f"buffer_load_dwordx4 v{PQ}, s[36:39], s13 offen lds")
        k(f"s_add_u32 s13, s13, {8*896 - 1024}")
        vm.issue(f"buffer_load_dwordx4 v{PQ}, s[36:39], s13 offen offset:1024 lds")
        k(f"""
        s_lshr_b32 s13, s15, 1
        s_mul_i32 s13, s13, {28*896}
        s_and_b32 s12, s15, 1
        s_mul_i32 s12, s12, {16*896}
        s_add_u32 s13, s13, s12
        s_add_u32 s13, s13, s16
        s_add_u32 m0, s26, {STG + 2048}
        """)
        srd(36, PWO, 448*448*2)
        vm.issue(f"buffer_load_dwordx4 v{PQ}, s[36:39], s13 offen lds")
        k(f"s_add_u32 s13, s13, {8*896 - 1024}")
        late["prep"] = vm.issue(f"buffer_load_dwordx4 v{PQ}, s[36:39], s13 offen offset:1024 lds")
    for c in range(7):
        wait(ct[c])
        for i in range(4):
            xr = lg.issue(f"ds_read_b128 {vr(XV+4*(4*c+i),4)}, v{XA0+i} offset:{(c%4)*XS_SLOT}")
        k("s_barrier")
        if c == 0: stamp("qkv first x")
        tk = [trread("v", CT + 4*p, 14 if p < 2 else PQ+1, 15 if p < 2 else PQ+2, (p % 2)*28*1024 + c*4096, (p % 2)*28*1024 + c*4096) for p in range(3)]
        rd = {}
        def rdf(f):
            i, p = f // 2, f % 2
            off = p*28*1024 + (4*c + i)*1024
            rd[f] = trread("a", BR + 4*f, TR1, TR2, off, off)
        for f in range(2): rdf(f)
        wait(None, xr)
        if c + 4 < 7: chunk0(c + 4)
        if c == 3: late_loads()
        for f in range(2, 4): rdf(f)
        for i in range(4):
            for j_ in range(4):
                x = XV + 4*(4*c+i) + j_
                k(f"v_dot2c_f32_bf16 v{STV + (j_ & 1)}, v{x}, v{STV+8}")
                k(f"v_dot2c_f32_bf16 v{STV + 2 + (j_ & 1)}, v{x}, v{x}")
        wait(None, rd[3])
        for f in range(4, 8): rdf(f)
        for j_ in range(4):
            for p in range(3):
                k(f"v_dot2c_f32_bf16 v{STV+4+p}, v{CT+4*p+j_}, v{STV+8}")
        for f in range(8):
            if f == 4: wait(None, rd[7])
            qkv_mfma(1 + f % 2, ar(BR + 4*f, 4), vr(XV + 4*(4*c + f//2), 4), not (c == 0 and f < 2))
    k(f"""
    s_lshl_b32 s12, s10, 10
    s_add_u32 s13, s10, 64
    s_min_u32 s13, s13, 83
    s_lshl_b32 s13, s13, 10
    v_add_u32 v14, s12, v2
    v_add_u32 v15, s13, v2
    ds_read_b128 a[8:11], v14
    ds_read_b128 a[12:15], v15
    """)
    for p in range(3):
        k(f"v_mov_b32 v{CT+p}, v{STV+4+p}")
    k(f"v_add_f32 v{STV}, v{STV}, v{STV+1}\nv_add_f32 v{STV+2}, v{STV+2}, v{STV+3}")
    for p in range(3):
        k(f"v_permlane32_swap_b32 v{CT+p}, v{STV+4+p}")
    k(f"v_permlane32_swap_b32 v{STV}, v{STV+2}")
    for p in range(3):
        k(f"v_add_f32 v{CT+p}, v{CT+p}, v{STV+4+p}")
    k(f"""
    v_add_f32 v{STV}, v{STV}, v{STV+2}
    v_add_u32 v13, s26, v2
    ds_write_b128 v13, {vr(CT,4)} offset:{4*XS_SLOT}
    v_add_u32 v13, s26, v{TRP}
    """)
    wait(late["prep"])
    for e_ in range(2): trread("a", 4*e_, 13, 13, STG + e_*512, STG + e_*512 + 1024)
    for e_ in range(2): trread("v", PQ + 4*e_, 13, 13, STG + 2048 + e_*512, STG + 2048 + e_*512 + 1024)
    run(stats_fin())
    k(f"""
    v_readfirstlane_b32 s43, v{TAGV+1}
    v_readfirstlane_b32 s42, v{TAGV}
    v_permlane32_swap_b32 v16, v18
    v_permlane32_swap_b32 v17, v19
    v_permlane32_swap_b32 v20, v22
    v_permlane32_swap_b32 v21, v23
    s_mul_i32 s12, s33, {112*2048}
    s_lshl_b32 s13, s14, 11
    s_add_u32 s12, s12, s13
    s_add_u32 s12, s12, {W2F}
    s_lshl_b32 s13, s33, 16
    s_lshl_b32 s16, s15, 11
    s_add_u32 s13, s13, s16
    s_add_u32 s13, s13, {WOF}
    s_bitcmp1_b32 s15, 0
    s_cselect_b32 s25, 0, -1
    s_mov_b32 s24, -1
    v_add_u32 v13, {XS_LDS + 4*XS_SLOT}, v2
    """)
    for i in range(8):
        k(f"v_lshlrev_b32 v{RES+2*i}, 16, v{16+i}")
        k(f"v_and_b32 v{RES+2*i+1}, 0xffff0000, v{16+i}")
    k("s_waitcnt lgkmcnt(0)\ns_barrier")
    lg.all_done()
    for w_ in range(4): lg.issue(f"ds_read_b128 {vr(16+4*w_,4)}, v13 offset:{w_*XS_W}")
    vm.issue(f"buffer_store_dwordx4 a[8:11], v14, s[4:7], s{S_WQ} offen {SC}")
    vm.issue(f"buffer_store_dwordx4 a[12:15], v15, s[4:7], s{S_WQ} offen {SC}")
    for e_ in range(2):
        for r in (2, 3): k(f"v_cndmask_b32 v{PQ+4*e_+r}, 0, v{PQ+4*e_+r}, s[24:25]")
    for e_ in range(2):
        vm.issue(f"buffer_store_dwordx4 {ar(4*e_,4)}, v2, s[4:7], s12 offen offset:{e_*1024} {SC}")
        vm.issue(f"buffer_store_dwordx4 {vr(PQ+4*e_,4)}, v2, s[4:7], s13 offen offset:{e_*1024} {SC}")
    k(f"s_cmp_eq_u32 s43, 0\ns_cbranch_scc1 {n}_tg")
    k.label(f"{n}_tb")
    ool.append([f"{n}_tg:", f"s_mov_b32 s16, {SPIN}",
                f"{n}_tm:", f"buffer_load_dwordx2 {vr(TAGV,2)}, off, s[44:47], 0 sc0 sc1",
                "s_sub_u32 s16, s16, 1", "s_cmp_eq_u32 s16, 0", f"s_cbranch_scc1 {n}_tb", "s_waitcnt vmcnt(0)",
                f"v_readfirstlane_b32 s43, v{TAGV+1}", f"v_readfirstlane_b32 s42, v{TAGV}", "s_cmp_eq_u32 s43, 0", f"s_cbranch_scc1 {n}_tm", f"s_branch {n}_tb"])
    bounce_w()
    k("s_waitcnt lgkmcnt(0)"); lg.all_done()
    for p in range(3):
        k(f"v_add_f32 v{16+p}, v{16+p}, v{20+p}\nv_add_f32 v{24+p}, v{24+p}, v{28+p}")
    bounce_r()
    for p, t in enumerate((1, 2, 0)):
        k(f"v_add_f32 v{16+p}, v{16+p}, v{24+p}")
        run(split2(CSQ + 2*t, 16 + p, 20 + p))
    k("s_waitcnt lgkmcnt(0)"); lg.all_done()
    k(f"s_branch {n}_qkv2")

    LA = 5
    def gpass(seq, frag_off, xreg, mf, side, xt=None, rd=None):
        rd = rd if rd is not None else {}
        def read(f):
            o1, o2, a1, a2 = frag_off(*seq[f])
            rd[f] = trread("a", BR + 4*(f % 8), a1, a2, o1, o2)
        nread = len(rd)
        while nread < LA: read(nread); nread += 1
        for i, (ks, t) in enumerate(seq):
            if nread < len(seq): read(nread); nread += 1
            if i % 2 == 0: wait(xt[ks] if xt else None, rd[i + 1])
            mf(i, ks, t, ar(BR + 4*(i % 8), 4), xreg(ks))
            run(side.get(i, []))
    def preread(seq, frag_off):
        rd = {}
        for f in range(LA):
            o1, o2, a1, a2 = frag_off(*seq[f]); rd[f] = trread("a", BR + 4*f, a1, a2, o1, o2)
        return rd

    def x_stream(XIN, ST, xreg, extra=()):
        k(f"s_add_u32 s11, s{S_XS}, {XIN}\ns_lshl_b32 s14, s10, 12\ns_add_u32 s14, s14, {ST}")
        xt = {}
        def xload(ks):
            def f():
                if ks and ks % 4 == 0: k("s_add_u32 s11, s11, 4096")
                xt[ks] = vm.issue(f"buffer_load_dwordx4 {xreg(ks)}, v2, s[4:7], s11 offen offset:{(ks%4)*1024} {SC}")
            return f
        side = {}
        stt = {}
        def sload(i):
            def f(): stt[i] = vm.issue(f"buffer_load_dword v{STV+i}, v4, s[4:7], s14 offen offset:{i*256} {SC}")
            return f
        for ks in range(8, 28): side.setdefault(2*(ks-8), []).append(xload(ks))
        for i in range(14): side.setdefault(2*i + 1, []).append(sload(i))
        for i, ex in enumerate(extra): side.setdefault(29 + 2*i, []).append(ex)
        side.setdefault(40, []).append(lambda: wait(stt[13]))
        e = spread(side, stats_sum() + stats_fin(), 40, 3)
        return xt, side, [xload(ks) for ks in range(8)], e

    k.label(f"{n}_qkv1")
    xv = lambda ks: vr(XV + 4*ks, 4)
    xt, side, first, e = x_stream(X2, ST2, xv)
    run(first)
    k(f"v_mov_b32 v{TR1}, v{TRP}\nv_add_u32 v{TR2}, 512, v{TRP}")
    wait(xt[0]); k("s_barrier")
    stamp("qkv first x")
    side.setdefault(e, []).append(bounce_w)
    side.setdefault(e + 3, []).append(bounce_r)
    gpass([(ks, t) for ks in range(28) for t in (1, 2)], lambda ks, t: ((t-1)*28*1024 + ks*1024,)*2 + (TR1, TR2), xv,
          lambda i, ks, t, wf, xf: qkv_mfma(t, wf, xf, ks > 0), side, xt)
    wait(None, lg.n)

    k.label(f"{n}_qkv2")
    stamp("qkv pass1 done")
    aq, ak, av = ACC, ACC + 16, ACC + 32
    k(f"v_add_u32 v{TR1}, {56*1024}, v{TR1}\nv_add_u32 v{TR2}, {56*1024}, v{TR2}")
    qkv_mfma(0, vr(CSQ, 2), vr(MUF, 2), False, MF8)
    seqq = [(ks, 0) for ks in range(28)]
    qoff = lambda ks, t: (ks*1024,)*2 + (TR1, TR2)
    rdq = preread(seqq, qoff)
    qkv_mfma(1, vr(CSQ+2, 2), vr(MUF, 2), True, MF8)
    k(f"""
    s_add_u32 s12, s{S_KVS}, s31
    v_mov_b32 v13, 0x3f803f80
    v_and_b32 v15, 31, v1
    v_cmp_eq_u32 vcc, 28, v15
    """)
    qkv_mfma(2, vr(CSQ+4, 2), vr(MUF, 2), True, MF8)
    k("s_nop 0\nv_cndmask_b32 v15, 0, v13, vcc")
    side = {}
    kvt = {}
    ep = [f"v_mul_f32 v{ak+i}, v{RSTD}, v{ak+i}" for i in range(16)]
    ep += [f"v_cvt_pk_bf16_f32 v{PKK+i}, v{ak+2*i}, v{ak+2*i+1}" for i in range(8)]
    ep += [f"v_cndmask_b32 v{PKK+6}, v13, v{PKK+6}, s[20:21]", f"v_cndmask_b32 v{PKK+7}, v13, v{PKK+7}, s[20:21]"]
    ep += [lambda: vm.issue(f"buffer_store_dwordx4 {vr(PKK,4)}, v2, s[4:7], s12 offen {SC}")]
    ep += [f"v_mul_f32 v{av+i}, v{STV+i}, v{av+i}" for i in range(4)]
    ep += [lambda: vm.issue(f"buffer_store_dwordx4 {vr(PKK+4,4)}, v2, s[4:7], s12 offen offset:1024 {SC}")]
    ep += [f"v_mul_f32 v{av+i}, v{STV+i}, v{av+i}" for i in range(4, 16)]
    ep += [f"v_cvt_pk_bf16_f32 v{PKV+i}, v{av+2*i}, v{av+2*i+1}" for i in range(8)]
    ep += [f"v_cndmask_b32 v{PKV+i}, v{PKV+i}, v15, s[22:23]" for i in range(4)]
    ep += [lambda: vm.issue(f"buffer_store_dwordx4 {vr(PKV,4)}, v2, s[4:7], s12 offen offset:2048 {SC}")]
    ep += [f"v_cndmask_b32 v{PKV+i}, v{PKV+i}, v15, s[22:23]" for i in range(4, 8)]
    def lastkv(): kvt[0] = vm.issue(f"buffer_store_dwordx4 {vr(PKV+4,4)}, v2, s[4:7], s12 offen offset:3072 {SC}")
    ep += [lastkv]
    e = spread(side, ep, 1, 3)
    misc = f"""v_mul_f32 v14, {hex(f2u(QSCALE))}, v{RSTD}
    s_lshl_b32 s16, s3, 11
    s_add_u32 s16, s16, {RED_LDS}
    v_add_u32 v13, s16, v2
    s_add_u32 s16, s{S_KVB}, s31
    s_add_u32 s44, s4, s16
    s_addc_u32 s45, s5, 0
    s_mov_b32 s46, 0x40000
    s_mov_b32 s47, 0x20000
    s_lshl_b32 s11, s8, 14
    s_mov_b32 s36, s{PW1}
    s_mov_b32 s37, s{PW1+1}
    s_mov_b32 s38, {448*1792*2}
    s_mov_b32 s39, 0x20000
    s_mov_b32 s40, s{S_W1}
    s_mul_i32 s41, s3, {28*1024}
    s_mov_b32 s13, s{S_WO}
    s_mov_b32 s27, s{S_W2}""".split("\n")
    spread(side, misc, e, 3)
    gpass(seqq, qoff, xv, lambda i, ks, t, wf, xf: qkv_mfma(0, wf, xf, True), side, None, rdq)
    stamp("qkv mfma done")
    AD = 80
    for i in range(4):
        k(f"v_add_u32 v{AD+i}, {i*(8*3584-1024)}, v{D1}")
    k(f"""
    v_lshlrev_b32 v{AD+5}, 3, v1
    v_and_b32 v{AD+4}, 0x78, v{AD+5}
    s_lshl_b32 s14, s30, 13
    s_lshl_b32 s15, s9, 9
    s_add_u32 s15, s15, {FLK}
    s_add_u32 s14, s14, s15
    s_lshl_b32 s19, s3, 7
    s_add_u32 s14, s14, s19
    """)
    for r in range(12, 16): k(f"v_cndmask_b32 v{aq+r}, 0, v{aq+r}, s[20:21]")
    for i in range(8):
        k(f"v_pk_mul_f32 {vr(aq+2*i,2)}, {vr(aq+2*i,2)}, {vr(14,2)} op_sel_hi:[1,0]")
    k(f"v_pk_mul_f32 {vr(MUF,2)}, {vr(aq,2)}, {vr(ak,2)}")
    for i in range(1, 8):
        k(f"v_pk_fma_f32 {vr(MUF,2)}, {vr(aq+2*i,2)}, {vr(ak+2*i,2)}, {vr(MUF,2)}")
    k(f"v_add_f32 v{MUF}, v{MUF}, v{MUF+1}")
    k(f"v_mov_b32 v{MUF+1}, v{MUF}")
    for i in range(4):
        k(f"v_cvt_pk_bf16_f32 v{PQ+i}, v{aq+2*i}, v{aq+2*i+1}")
    k(f"""
    v_permlane32_swap_b32 v{MUF}, v{MUF+1}
    ds_write_b128 v13, {vr(PQ,4)}
    v_add_f32 v{MUF}, v{MUF}, v{MUF+1}
    v_sub_f32 v{MUF}, 0, v{MUF}
    v_cndmask_b32 v{aq+12}, v{MUF}, v{aq+12}, s[20:21]
    """)
    for i in range(4, 8):
        k(f"v_cvt_pk_bf16_f32 v{PQ+i}, v{aq+2*i}, v{aq+2*i+1}")
    k(f"""
    ds_write_b128 v13, {vr(PQ+4,4)} offset:1024
    s_add_u32 s16, s33, 7
    s_cmp_ge_u32 s34, 7
    s_cselect_b32 s16, s33, s16
    s_lshl_b32 s16, s16, 9
    s_add_u32 s16, s16, {FLK}
    s_lshl_b32 s24, s8, 3
    s_add_u32 s24, s24, s14
    s_getreg_b32 s25, hwreg(HW_REG_XCC_ID, 0, 4)
    s_or_b32 s25, s25, s42
    v_mov_b32 v14, s25
    v_mov_b32 v15, s43
    s_lshl_b32 s25, s9, 3
    s_add_u32 s25, s25, s32
    s_waitcnt lgkmcnt(0)
    s_barrier
    """)
    lg.all_done()
    Q, OV, S, P, RED = 16, 48, 112, 144, 160
    OA = RED
    for i in range(4):
        k(f"v_xor_b32 v12, {(i^3)*2048}, v13" if i != 3 else "v_mov_b32 v12, v13")
        k(f"ds_read_b128 {vr(Q+8*i,4)}, v12")
        k(f"ds_read_b128 {vr(Q+8*i+4,4)}, v12 offset:1024")
    def kvflag():
        wait(kvt[0])
        k("s_mov_b64 exec, 1")
        vm.issue(f"buffer_store_dwordx2 {vr(TAGV,2)}, off, s[4:7], s24 {SC}")
        vm.issue(f"buffer_store_dwordx2 v[14:15], off, s[4:7], s25 offset:{5*512} {SC}")
        k("s_mov_b64 exec, -1")
        stamp("kv flagged")
    gather = f"buffer_load_dword v{AD+7}, v{PT}, s[4:7], 0 offen {SC}"
    k(f"""
    v_and_b32 v{AD+6}, 31, v1
    v_lshlrev_b32 v{AD+6}, 7, v{AD+6}
    v_mul_u32_u24 v12, {56*1024}, v5
    v_add_u32 v{AD+6}, v12, v{AD+6}
    """)
    kvflag()
    if env("X_NOPT") != "1" and env("X_NOEARLY") != "1": vm.issue(gather)
    k("s_waitcnt lgkmcnt(0)\ns_barrier")
    def kf(nn, c): return vr(PKK + 4*c, 4) if nn == 0 else ar((nn % 3)*16 + 4*c, 4)
    def vf(nn, c): return vr(PKV + 4*c, 4) if nn == 0 else ar((nn % 3)*16 + 8 + 4*c, 4)
    def oacc(i): return vr(OV, 16) if i == 3 else vr(OA + 16*i, 16)
    def smf(u, c):
        nn, i = u // 4, u % 4
        d = vr(S + 16*(u % 2), 16)
        return f"{MF} {d}, {kf(nn,c)}, {vr(Q+8*i+4*c,4)}, {'0' if c == 0 else d}"
    def pvmf(u, c):
        nn, i = u // 4, u % 4
        d = oacc(i)
        return f"{MF} {d}, {vf(nn,c)}, {vr(P+8*(u%2)+4*c,4)}, {'0' if (nn == 0 and c == 0) else d}"
    def kvl(nn, j_):
        return f"buffer_load_dwordx4 {ar((nn%3)*16+4*j_,4)}, v2, s[44:47], s11 offen offset:{j_*1024} {SC}"
    adv = ["s_add_u32 s11, s11, 16384", "s_and_b32 s11, s11, 0x3ffff"]
    def unit(u, m, slots, pre=()):
        sb = S + 16*(u % 2); pb = P + 8*(u % 2)
        ex = [f"v_exp_f32 v{sb+r}, v{sb+r}" for r in range(16)]
        cv = [f"v_cvt_pk_bf16_f32 v{pb+r}, v{sb+2*r}, v{sb+2*r+1}" for r in range(8)]
        grp = [[ex[0], ex[1], ex[2], ex[3], cv[0], ex[4]], [ex[5], cv[1], ex[6], ex[7], cv[2], ex[8]],
               [ex[9], cv[3], ex[10], ex[11], cv[4], ex[12]], [ex[13], ex[14], cv[5], ex[15], cv[6], cv[7]]]
        run(pre)
        for p in range(4):
            k(m[p])
            run(slots.get(p, []))
            run(grp[p])
    def std_m(u): return [smf(u+1, 0), smf(u+1, 1), pvmf(u-1, 0), pvmf(u-1, 1)]
    k(smf(0, 0)); k(smf(0, 1))
    k.nop(11)
    unit(0, [smf(1, 0), smf(1, 1), "", ""], {})
    unit(1, std_m(1), {})
    unit(2, std_m(2), {})
    kvp = f"buffer_load_dwordx2 v[14:15], v{AD+4}, s[4:7], s14 offen {SC}"
    pl = {}
    def kvpoll(): pl[0] = vm.issue(kvp)
    unit(3, ["", "", pvmf(2, 0), pvmf(2, 1)], {0: [kvpoll]})
    poll_check(pl[0], [kvp])
    stamp("kv ready")
    kt = {}
    for nn in (1, 2):
        run(adv)
        for j_ in range(4):
            t_ = vm.issue(kvl(nn, j_))
            if j_ == 1: kt[(nn, "k")] = t_
            kt[nn] = t_
    wp = [f"buffer_load_dwordx2 v[14:15], v{AD+5}, s[4:7], s15 offen {SC}", f"buffer_load_dwordx2 v[12:13], v{AD+5}, s[4:7], s16 offen {SC}"]
    vm.issue(wp[0]); pl[1] = vm.issue(wp[1])
    k(pvmf(3, 0)); k(pvmf(3, 1))
    wait(kt[(1, "k")])
    stamp("att first kv")
    k(smf(4, 0)); k(smf(4, 1))
    k.nop(11)
    def opw(idx):
        kk, nu = idx // 2, idx % 2
        def f():
            if idx and idx % 4 == 0: k("s_add_u32 s13, s13, 4096")
            vm.issue(f"buffer_load_dwordx4 {ar(OPW+8*kk+4*nu,4)}, v{6+nu}, s[4:7], s13 offen offset:{(kk%2)*2048} {SC}")
        return f
    def kvi(nn, j_):
        def f():
            if j_ == 0: run(adv)
            kt[nn] = vm.issue(kvl(nn, j_))
        return f
    oi = 0
    for u in range(4, 12):
        nn, i = u // 4, u % 4
        sl = {}
        if i < 2:
            sl[1] = [kvi(nn + 2, 2*i)]; sl[3] = [kvi(nn + 2, 2*i + 1)]
            if u >= 8:
                for p in (0, 2): sl[p] = [opw(oi)]; oi += 1
        else:
            for p in (0, 1, 3): sl[p] = [opw(oi)]; oi += 1
        m = std_m(u)
        if u == 4: m[2] = m[3] = ""
        pre = []
        if u == 5: pre = [lambda: wait(kt[1])]
        if u == 6: pre = [lambda: poll_check(pl[1], wp, regs=(14, 12))]
        if i == 3: pre = [lambda nn=nn: wait(kt[nn + 1])]
        unit(u, m, sl, pre)
    assert oi == 16
    k("s_mov_b32 s26, 3")
    stamp("att secA done")
    def dma_slots(sl, t, cnt):
        pos = [(4*t+2, 1), (4*t+2, 3), (4*t+3, 1), (4*t+3, 3)]
        for q in range(cnt):
            L = [f"buffer_load_dwordx4 v{AD+q}, s[36:39], s40 offen offset:{q*1024} lds"]
            if q == cnt - 1: L += [f"s_add_u32 s40, s40, {cnt*8*3584}", f"s_add_u32 s41, s41, {cnt*1024}"]
            sl[pos[q]] = (("dma",), L)
        sl[(4*t+2, 0)] = (None, ["s_mov_b32 m0, s41"])
    def kv_slots(sl, t, nn):
        sl[(4*t, 1)] = (("kv", t + 2), adv + [kvl(nn + 2, 0)])
        sl[(4*t, 3)] = (("kv", t + 2), [kvl(nn + 2, 1)])
        sl[(4*t+1, 1)] = (("kv", t + 2), [kvl(nn + 2, 2)])
        sl[(4*t+1, 3)] = (("kv", t + 2), [kvl(nn + 2, 3)])
    slL = {}
    for t in range(3):
        kv_slots(slL, t, 3 + t)
        dma_slots(slL, t, (4, 4, 1)[t])
    slT = {}
    for t in range(2): kv_slots(slT, t, 12 + t)
    dma_slots(slT, 0, 1)
    def w2a_lines(idx):
        kk, nu = idx // 2, idx % 2
        return (["s_add_u32 s27, s27, 4096"] if idx and idx % 4 == 0 else []) + \
               [f"buffer_load_dwordx4 {ar(W2A+8*kk+4*nu,4)}, v{6+nu}, s[4:7], s27 offen offset:{(kk%2)*2048} {SC}"]
    if env("X_NOPT") != "1":
        slT[(6, 1)] = (("pt",), [gather])
        if not DATASC: slT[(6, 3)] = (("pt",), [f"s_cmp_eq_u32 s30, 0", f"s_cselect_b32 s19, 0x7fffffff, s{S_HFS}", f"buffer_load_dword v{AD+7}, v{AD+6}, s[4:7], s19 offen {SC}"])
    slT[(7, 1)] = (("xid",), [f"buffer_load_dwordx2 v[14:15], v{AD+4}, s[4:7], s32 offen offset:{5*512} {SC}"])
    free = [(u, p) for u in range(14) for p in (2, 1, 3) if (u, p) not in slT]
    cntu = {}
    idx = 0
    for (u, p) in free:
        used = sum(1 for (a, b), v_ in slT.items() if a == u and v_[0])
        if idx < W2A_ATT and used < (3 if W2A_ATT > 17 else 2):
            slT[(u, p)] = (("w",), None, idx); idx += 1
    assert idx == W2A_ATT, idx
    order = sorted(pos for pos, v_ in slT.items() if v_[0] == ("w",))
    for i_, pos in enumerate(order): slT[pos] = (("w",), w2a_lines(i_))
    ops = [("kv", 4)] + [("x",)] * (vm.n - kt[4])
    wcnt = {}
    for it in range(4):
        sl = slL if it < 3 else slT
        for uu in range(12 if it < 3 else 16):
            t, i = uu // 4, uu % 4
            if i == 3 and not (it == 3 and t == 3):
                needt = 3 + 3*it + t + 1
                ix = max(x for x, o in enumerate(ops) if o == ("kv", needt))
                key = (it == 3, uu)
                wcnt[key] = min(wcnt.get(key, 63), len(ops) - 1 - ix)
            for p in range(4):
                if (uu, p) in sl and sl[(uu, p)][0]:
                    tag = sl[(uu, p)][0]
                    ops.append(("kv", 3 + 3*it + tag[1]) if tag[0] == "kv" else tag)
    k(".p2align 6")
    k.label(f"{n}_loop")
    for uu in range(12):
        u = 12 + uu
        slots = {p: list(slL[(uu, p)][1]) for p in range(4) if (uu, p) in slL}
        if uu == 11: slots.setdefault(3, []).extend(["s_sub_u32 s26, s26, 1", "s_cmp_lg_u32 s26, 0"])
        unit(u, std_m(u), slots, [f"s_waitcnt vmcnt({wcnt[(False, uu)]})"] if (False, uu) in wcnt else [])
    k(f"s_cbranch_scc1 {n}_loop")
    def owr(i, q): return f"ds_write_b128 v{8+(i^3)}, {vr(OA+16*i+4*q,4)} offset:{q*1024}"
    for uu in range(16):
        u = 48 + uu
        slots = {p: list(slT[(uu, p)][1]) for p in range(4) if (uu, p) in slT}
        pre = [f"s_waitcnt vmcnt({wcnt[(True, uu)]})"] if (True, uu) in wcnt else []
        m = std_m(u)
        if u == 61: m = [pvmf(60, 0), pvmf(60, 1), smf(62, 0), smf(62, 1)]
        if u == 62:
            m = [pvmf(61, 0), pvmf(61, 1), smf(63, 0), smf(63, 1)]; slots = {p: [owr(0, p)] for p in range(4)}; pre = ["s_nop 3"]
        if u == 63:
            m = [pvmf(62, 0), pvmf(62, 1), "", ""]; slots = {p: [owr(1, p)] for p in range(4)}; pre = ["s_nop 2"]
        unit(u, m, slots, pre)
    for q in range(2): k(owr(2, q))
    k(pvmf(63, 0)); k(pvmf(63, 1))
    for q in range(2, 4): k(owr(2, q))
    stamp("att loop done")
    k(f"""
    s_getreg_b32 s25, hwreg(HW_REG_XCC_ID, 0, 4)
    s_or_b32 s24, s25, s42
    s_mov_b32 s25, s43
    s_waitcnt vmcnt(0) lgkmcnt(0)
    s_barrier
    """)
    vm.all_done(); lg.all_done()
    for j_ in range(12):
        k(f"ds_read_b128 {vr(RED+4*j_,4)}, v8 offset:{j_*1024}")
    k(f"""
    v_cmp_ne_u64 vcc, s[24:25], v[14:15]
    s_mov_b32 s14, {hex(f2u(2.0**-40))}
    s_mov_b32 s16, {hex(f2u(2.0**40))}
    s_cmp_lg_u64 vcc, 0
    s_cselect_b32 s35, 1, {1 if NOFAST else 0}
    s_xor_b32 s{S_HSLOW}, s30, 1
    s_or_b32 s{S_HSLOW}, s{S_HSLOW}, s35
    """)
    for s_ in range(3):
        k(f"s_waitcnt lgkmcnt({8-4*s_})")
        for i in range(8):
            k(f"v_pk_add_f32 {vr(OV+2*i,2)}, {vr(OV+2*i,2)}, {vr(RED+16*s_+2*i,2)}")
    k(f"""
    v_mov_b32 v12, v{OV+12}
    v_mov_b32 v13, v{OV+12}
    s_mov_b32 s11, s{S_OA0}
    s_mov_b32 s12, s{S_OA1}
    v_permlane32_swap_b32 v12, v13
    v_cmp_lt_f32 vcc, s14, v13
    v_cmp_gt_f32 s[24:25], s16, v13
    s_and_b64 vcc, vcc, s[24:25]
    s_cmp_eq_u64 vcc, exec
    s_cbranch_scc0 {n}_slow
    """)
    k.label(f"{n}_fin")
    k(f"v_rcp_f32 v12, v13\ns_nop 0")
    for i in range(8):
        k(f"v_pk_mul_f32 {vr(OV+2*i,2)}, {vr(OV+2*i,2)}, {vr(12,2)} op_sel_hi:[1,0]")
    for i in range(8):
        k(f"v_cvt_pk_bf16_f32 v{P+i}, v{OV+2*i}, v{OV+2*i+1}")
    ot = hstore([f"buffer_store_dwordx4 {vr(P,4)}, v2, s[4:7], s{S_OFS} offen", f"buffer_store_dwordx4 {vr(P+4,4)}, v2, s[4:7], s{S_OFS} offen offset:1024"])
    wait(ot)
    flag(0, 17)
    stamp("o flagged")
    k(f"s_cmp_ge_u32 s9, 14\ns_cbranch_scc1 {n}_idle")
    k(f"s_cmp_eq_u32 s30, 0\ns_cbranch_scc1 {n}_cs1")
    k.label(f"{n}_cs1b")

    def tail_order(first_ks, last_ks, mf, each=None):
        for x, i in enumerate((1, 2, 3, 0)):
            for ks in range(first_ks, last_ks + 1):
                mf(ks, i)
                if each: each()
                if x >= 1 and ks - first_ks >= 2:
                    prev = (1, 2, 3, 0)[x - 1]
                    for q in ((0, 1) if ks - first_ks == 2 else (2, 3)):
                        k(f"ds_write_b128 v{8+prev}, {vr(ACC+16*prev+4*q,4)} offset:{q*1024}")
                elif x >= 1:
                    k("s_nop 4")

    def gemmB_epilogue(kind):
        RD = 104
        XOUT, ST = (X1, ST1) if kind == "op" else (X2, ST2)
        k(f"""
        s_add_u32 s14, s{S_XT}, {XOUT}
        s_add_u32 s19, s{S_STT}, {ST}
        s_waitcnt lgkmcnt(0)
        s_barrier
        """)
        for j_ in range(12):
            k(f"ds_read_b128 {vr(RD+4*j_,4)}, v8 offset:{j_*1024}")
        for i in range(8):
            k(f"v_pk_add_f32 {vr(RES+2*i,2)}, {vr(RES+2*i,2)}, {vr(ACC+2*i,2)}")
        for s_ in range(3):
            k(f"s_waitcnt lgkmcnt({8-4*s_})")
            for i in range(8):
                k(f"v_pk_add_f32 {vr(RES+2*i,2)}, {vr(RES+2*i,2)}, {vr(RD+16*s_+2*i,2)}")
        lg.all_done()
        PP = 80
        for i in range(8):
            k(f"v_cvt_pk_bf16_f32 v{PP+i}, v{RES+2*i}, v{RES+2*i+1}")
        if kind == "f2":
            k(f"s_cmp_eq_u32 s30, 1\ns_cbranch_scc1 {n}_final")
        hstore([f"buffer_store_dwordx4 {vr(PP,4)}, v2, s[4:7], s14 offen", f"buffer_store_dwordx4 {vr(PP+4,4)}, v2, s[4:7], s14 offen offset:1024"])
        S1, S2 = RD, RD + 2
        k(f"v_pk_add_f32 {vr(S1,2)}, {vr(RES,2)}, {vr(RES+2,2)}")
        k(f"v_pk_mul_f32 {vr(S2,2)}, {vr(RES,2)}, {vr(RES,2)}")
        k(f"v_pk_fma_f32 {vr(S2,2)}, {vr(RES+2,2)}, {vr(RES+2,2)}, {vr(S2,2)}")
        for i in range(2, 8):
            k(f"v_pk_add_f32 {vr(S1,2)}, {vr(S1,2)}, {vr(RES+2*i,2)}")
            k(f"v_pk_fma_f32 {vr(S2,2)}, {vr(RES+2*i,2)}, {vr(RES+2*i,2)}, {vr(S2,2)}")
        k(f"""
        v_add_f32 v{S1}, v{S1}, v{S1+1}
        v_add_f32 v{S2}, v{S2}, v{S2+1}
        s_nop 1
        v_permlane32_swap_b32 v{S1}, v{S2}
        v_add_f32 v{S1}, v{S1}, v{S2}
        """)
        return hstore([f"buffer_store_dword v{S1}, v4, s[4:7], s19 offen"])

    poll(0, 3)
    stamp("o ready")
    at = {}
    for ks in range(8):
        if ks == 4: k("s_add_u32 s11, s11, 4096\ns_add_u32 s12, s12, 4096")
        vm.issue(f"buffer_load_dwordx4 {ar(8*ks,4)}, v2, s[4:7], s11 offen offset:{(ks%4)*1024} {SC}")
        at[ks] = vm.issue(f"buffer_load_dwordx4 {ar(8*ks+4,4)}, v2, s[4:7], s12 offen offset:{(ks%4)*1024} {SC}")
    w2n = [W2A_ATT, 0]
    def w2a_load():
        w2n[1] += 1
        if w2n[0] >= 28 or w2n[1] <= 4: return
        for l in w2a_lines(w2n[0]):
            if l.startswith("buffer"): vm.issue(l)
            else: k(l)
        w2n[0] += 1
    def op_mf(ks, i):
        nu, rho = i // 2, i % 2
        acc = vr(ACC + 16*i, 16)
        wait(at[ks])
        k(f"{MF} {acc}, {ar(OPW+8*ks+4*nu,4)}, {ar(8*ks+4*rho,4)}, {'0' if ks == 0 else acc}")
    for ks in range(4):
        for i in range(4): op_mf(ks, i)
    k("s_barrier")
    tail_order(4, 7, op_mf, w2a_load)
    assert w2n[0] == 28
    stamp("op mfma done")
    xs = gemmB_epilogue("op")
    xa = lambda ks: ar(4*ks, 4)
    cst = {}
    def cs1_load(t):
        def f():
            if t == 0: k(f"s_lshl_b32 s16, s2, 11\ns_add_u32 s16, s16, {CSW}\nv_lshlrev_b32 v13, 3, v1")
            cst[0] = vm.issue(f"buffer_load_dwordx2 {vr(CS1+2*t,2)}, v13, s[4:7], s16 offen offset:{t*512} {SC}")
        return f
    xt, side, first, e = x_stream(X1, ST1, xa, [cs1_load(t) for t in range(4)])
    k(f"v_mov_b32 v{TR1}, v{TRP}")
    f1off = lambda ks, t: (ks*2048 + (t % 2)*512, ks*2048 + (t % 2)*512 + 1024, TR1, TR1)
    seq1 = [(ks, t) for ks in range(28) for t in (0, 1)]
    rd1 = preread(seq1, f1off)
    wait(xs)
    flag(1, 18)
    stamp("x1 flagged")
    poll(1, 0)
    stamp("x1 ready")
    run(first)
    side.setdefault(52, []).extend([f"s_add_u32 s19, s{S_HFS}, {56*1024}", f"s_add_u32 s27, s{S_W2}, {56*2048}"])
    def f1_mf(i, ks, t, wf, xf, init=True):
        acc = vr(ACC + 16*t, 16)
        k(f"{MF} {acc}, {wf}, {xf}, {'0' if (ks == 0 and init) else acc}")
    gpass(seq1, f1off, xa, f1_mf, side, xt, rd1)
    stamp("f1 pass1 done")
    k(f"v_add_u32 v{TR1}, {56*1024}, v{TR1}")
    wait(cst[0])
    def corr(t, cin):
        acc = vr(ACC + 16*t, 16)
        k(f"{MF8} {acc}, {vr(CS1+2*t,2)}, {vr(MUF,2)}, {acc if cin else '0'}")
    corr(2, False); corr(3, False)
    seq2 = [(ks, t) for ks in range(28) for t in (2, 3)]
    rd2 = preread(seq2, f1off)
    corr(0, True); corr(1, True)
    side = {}
    hs = {}
    def f1_ep(t, pk):
        a = ACC + 16*t
        L = []
        if pk: L += [f"v_pk_mul_f32 {vr(a+2*i,2)}, {vr(a+2*i,2)}, {vr(RSTD,2)} op_sel_hi:[1,0]" for i in range(8)]
        else: L += [f"v_mul_f32 v{a+i}, v{RSTD}, v{a+i}" for i in range(16)]
        L += [f"v_cvt_pk_bf16_f32 v{a+i}, v{a+2*i}, v{a+2*i+1}" for i in range(8)]
        L += [f"v_pk_max_i16 v{a+i}, v{a+i}, 0" for i in range(8)]
        sb = S_HFS if t < 2 else 19
        def st_():
            hs[t] = hstore([f"buffer_store_dwordx4 {vr(a,4)}, v2, s[4:7], s{sb} offen offset:{(t%2)*2048}",
                            f"buffer_store_dwordx4 {vr(a+4,4)}, v2, s[4:7], s{sb} offen offset:{(t%2)*2048+1024}"], S_HSLOW)
        L.append(st_)
        return L
    items = f1_ep(0, False) + f1_ep(1, False)
    i_ = 3
    while items:
        c_ = 3 if i_ % 2 == 0 else 2
        side.setdefault(i_, []).extend(items[:c_]); items = items[c_:]; i_ += 1
    def w2b_load(ks):
        def f():
            kk, nu = ks // 2, ks % 2
            if ks and ks % 4 == 0: k("s_add_u32 s27, s27, 4096")
            vm.issue(f"buffer_load_dwordx4 {ar(4*ks,4)}, v{6+nu}, s[4:7], s27 offen offset:{(kk%2)*2048} {SC}")
        return f
    for ks in range(28): side.setdefault(2*ks + 1, []).insert(0, w2b_load(ks))
    def sig_a():
        wait(hs[1]); flag(2, 17)
    side.setdefault(42, []).append(sig_a)
    def poll_a(): pl[2] = vm.issue(poll_line(2, VBH))
    side.setdefault(50, []).append(poll_a)
    side.setdefault(52, []).extend([f"s_mov_b32 s11, s{S_HA0}", f"s_mov_b32 s12, s{S_HA1}"])
    gpass(seq2, f1off, xa, lambda i, ks, t, wf, xf: f1_mf(i, ks, t, wf, xf, False), side, None, rd2)
    stamp("ffn1 mfma done")
    poll_check(pl[2], [poll_line(2, VBH)])
    AR = 96
    at = {}
    def aload(ks):
        m_ = ks % 14
        if ks == 14: k(f"s_add_u32 s11, s11, {56*1024 - 12*1024}\ns_add_u32 s12, s12, {56*1024 - 12*1024}")
        if m_ and m_ % 4 == 0: k("s_add_u32 s11, s11, 4096\ns_add_u32 s12, s12, 4096")
        b = AR + 8*m_
        vm.issue(f"buffer_load_dwordx4 {vr(b,4)}, v2, s[4:7], s11 offen offset:{(m_%4)*1024} {SC}")
        at[ks] = vm.issue(f"buffer_load_dwordx4 {vr(b+4,4)}, v2, s[4:7], s12 offen offset:{(m_%4)*1024} {SC}")
    for ks in range(4): aload(ks)
    na = 4
    for i, it in enumerate(f1_ep(2, True) + f1_ep(3, True)):
        run([it])
        if i % 10 == 9 and na < 8: aload(na); na += 1
    def qkv_dma_setup():
        k(f"""
        s_mul_i32 s41, s3, {21*1024}
        s_add_u32 s40, s41, s{S_WQ}
        s_cmp_eq_u32 s30, 0
        s_cselect_b32 s40, s40, 0x7fffffff
        """)
    def qkv_dma3():
        k("s_mov_b32 m0, s41\ns_add_u32 s41, s41, 3072")
        for q in range(3): vm.issue(f"buffer_load_dwordx4 v2, s[4:7], s40 offen offset:{q*1024} {SC} lds")
        k("s_add_u32 s40, s40, 3072")
    def w2reg(ks, nu): return W2A + 8*ks + 4*nu if ks < 14 else 8*(ks-14) + 4*nu
    def f2_mf(ks, i):
        nu, rho = i // 2, i % 2
        acc = vr(ACC + 16*i, 16)
        wait(at[ks])
        k(f"{MF} {acc}, {ar(w2reg(ks,nu),4)}, {vr(AR+8*(ks%14)+4*rho,4)}, {'0' if ks == 0 else acc}")
    for ks in range(24):
        for i in range(4):
            f2_mf(ks, i)
            if i == 0 and na < 14: aload(na); na += 1
            if ks >= 8 and i in (1, 3) and na < 28 and na - 14 < ks: aload(na); na += 1
        if ks == 1:
            wait(hs[3]); flag(3, 17)
        if ks == 3: k("s_barrier"); qkv_dma_setup()
        if ks == 5: pl[3] = vm.issue(poll_line(3, VBH))
        if ks == 7:
            poll_check(pl[3], [poll_line(3, VBH)]); stamp("h.b ready")
        if ks >= 20: qkv_dma3()
    assert na == 28
    cnt = [0]
    def dma_tail():
        cnt[0] += 1
        if cnt[0] in (1, 5, 9): qkv_dma3()
    tail_order(24, 27, f2_mf, dma_tail)
    stamp("f2 mfma done")
    xs = gemmB_epilogue("f2")
    wait(xs)
    flag(4, 18)
    stamp("end")
    k.label(f"{n}_next")
    def flush():
        if not STAMP: return
        k(f"""
        s_waitcnt lgkmcnt(0)
        s_lshl_b32 s24, s2, 2
        s_add_u32 s24, s24, s3
        s_lshl_b32 s24, s24, 1
        s_add_u32 s24, s24, s30
        s_lshl_b32 s24, s24, 7
        s_add_u32 s24, s24, {TS}
        v_mov_b32 v14, 0
        """)
        for i in range(11):
            k(f"v_mov_b32 v15, s{80+2*i}\nbuffer_store_dword v15, v14, s[4:7], s24 offen offset:{4*i}")
        if env("DBGOUT") == "1":
            uid[0] += 1
            k(f"s_or_b32 s24, s2, s3\ns_cmp_lg_u32 s24, 0\ns_cbranch_scc1 {n}_dbg{uid[0]}")
            srd(44, PDBG, 256)
            k("s_mul_i32 s24, s30, 28")
            for q, i in enumerate((1, 2, 4, 5, 8, 9, 10)):
                k(f"s_sub_u32 s25, s{80+2*i}, s42\nv_mov_b32 v15, s25\nbuffer_store_dword v15, v14, s[44:47], s24 offen offset:{8+4*q}")
            k.label(f"{n}_dbg{uid[0]}")
    flush()
    poll(4, 0)
    stamp("start")
    k(f"""
    s_mov_b32 s30, 1
    s_mov_b32 s31, {KV + KVL}
    s_add_u32 s32, s32, 0x10000
    s_branch {n}_qkv1
    """)
    k.label(f"{n}_idle")
    flush()
    k(f"s_cmp_eq_u32 s30, 1\ns_cbranch_scc1 {n}_end")
    qkv_dma_setup()
    for c in range(7): qkv_dma3()
    k(f"s_branch {n}_next")
    k.label(f"{n}_cs1")
    k(f"""
    s_lshr_b32 s16, s3, 1
    s_mul_i32 s16, s16, {56*1024}
    s_and_b32 s19, s3, 1
    s_lshl_b32 s19, s19, 9
    s_add_u32 s16, s16, s19
    v_add_u32 v13, s16, v{TRP}
    v_mov_b32 v14, 0
    v_mov_b32 v15, 0
    v_mov_b32 v12, 0x3f803f80
    """)
    for ks in range(34):
        if ks < 28:
            k(f"ds_read_b64_tr_b16 {vr(112+4*(ks%8),2)}, v13 offset:{ks*2048}")
            k(f"ds_read_b64_tr_b16 {vr(112+4*(ks%8)+2,2)}, v13 offset:{ks*2048+1024}")
        if ks >= 6:
            k(f"s_waitcnt lgkmcnt({2*(min(ks, 27) - (ks - 6))})")
            for r in range(4): k(f"v_dot2c_f32_bf16 v{14+(r&1)}, v{112+4*((ks-6)%8)+r}, v12")
    k(f"""
    s_lshl_b32 s16, s2, 11
    s_lshl_b32 s19, s3, 9
    s_add_u32 s16, s16, s19
    s_add_u32 s16, s16, {CSW}
    v_add_f32 v14, v14, v15
    v_mov_b32 v15, v14
    v_lshlrev_b32 v13, 3, v1
    s_nop 0
    v_permlane32_swap_b32 v14, v15
    v_add_f32 v14, v14, v15
    """)
    run(split2(112, 14, 15))
    k(f"buffer_store_dwordx2 v[112:113], v13, s[4:7], s16 offen {SC}\ns_branch {n}_cs1b")
    k.label(f"{n}_final")
    PP = 80
    srd(36, POUT, 2048*448*2)
    k(f"""
    v_and_b32 v14, 31, v1
    v_mul_u32_u24 v14, 896, v14
    v_lshl_add_u32 v14, v5, 4, v14
    s_mul_i32 s14, s28, {32*896}
    s_lshl_b32 s15, s29, 6
    s_add_u32 s14, s14, s15
    v_permlane32_swap_b32 v{PP}, v{PP+2}
    v_permlane32_swap_b32 v{PP+1}, v{PP+3}
    v_permlane32_swap_b32 v{PP+4}, v{PP+6}
    v_permlane32_swap_b32 v{PP+5}, v{PP+7}
    buffer_store_dwordx4 {vr(PP,4)}, v14, s[36:39], s14 offen
    buffer_store_dwordx4 {vr(PP+4,4)}, v14, s[36:39], s14 offen offset:32
    """)
    if STAMP:
        k("s_waitcnt vmcnt(0)"); stamp("end")
    flush()
    k("s_endpgm")
    for o in ool:
        for l in o:
            if l.endswith(":"): k.label(l[:-1])
            else: k(l)
    k.label(f"{n}_slow")
    sm = lambda c: f"{MF} {vr(S,16)}, {ar(4*c,4)}, {vr(Q+24+4*c,4)}, {'0' if c == 0 else vr(S,16)}"
    allk = f"buffer_load_dwordx2 v[14:15], v{AD+5}, s[4:7], s19 offen {SC}"
    k(f"""
    s_lshl_b32 s19, s30, 13
    s_add_u32 s19, s19, s15
    s_mov_b32 s25, {SPIN}
    """)
    k.label(f"{n}_slow0")
    k(f"""
    {allk}
    s_sub_u32 s25, s25, 1
    s_cmp_eq_u32 s25, 0
    s_cbranch_scc1 {n}_slow0x
    s_waitcnt vmcnt(0)
    v_cmp_ne_u64 vcc, s[42:43], v[14:15]
    s_cbranch_vccnz {n}_slow0
    """)
    k.label(f"{n}_slow0x")
    k(f"""
    s_waitcnt vmcnt(0)
    s_lshl_b32 s19, s9, 18
    s_add_u32 s19, s19, s31
    s_mov_b32 s13, s19
    s_mov_b32 s26, 64
    v_mov_b32 v14, 0xff800000
    """)
    k.label(f"{n}_slow1")
    k(f"""
    buffer_load_dwordx4 a[0:3], v2, s[4:7], s19 offen {SC}
    buffer_load_dwordx4 a[4:7], v2, s[4:7], s19 offen offset:1024 {SC}
    s_add_u32 s19, s19, 4096
    s_waitcnt vmcnt(0)
    {sm(0)}
    {sm(1)}
    """)
    k.nop(12)
    for r in range(8):
        k(f"v_max3_f32 v14, v{S+2*r}, v{S+2*r+1}, v14")
    k(f"""
    s_sub_u32 s26, s26, 1
    s_cmp_lg_u32 s26, 0
    s_cbranch_scc1 {n}_slow1
    v_mov_b32 v15, v14
    s_nop 1
    v_permlane32_swap_b32 v14, v15
    v_max_f32 v14, v14, v15
    s_mov_b32 s19, s13
    s_mov_b32 s26, 64
    """)
    for r in range(16): k(f"v_mov_b32 v{OV+r}, 0")
    k.label(f"{n}_slow2")
    for j_ in range(4):
        k(f"buffer_load_dwordx4 {ar(4*j_,4)}, v2, s[4:7], s19 offen offset:{j_*1024} {SC}")
    k(f"""
    s_add_u32 s19, s19, 4096
    s_waitcnt vmcnt(0)
    {sm(0)}
    {sm(1)}
    """)
    k.nop(12)
    for r in range(16): k(f"v_sub_f32 v{S+r}, v{S+r}, v14")
    for r in range(16): k(f"v_exp_f32 v{S+r}, v{S+r}")
    k("s_nop 0")
    for r in range(8): k(f"v_cvt_pk_bf16_f32 v{P+r}, v{S+2*r}, v{S+2*r+1}")
    k("s_nop 1")
    for c in range(2): k(f"{MF} {vr(OV,16)}, {ar(8+4*c,4)}, {vr(P+4*c,4)}, {vr(OV,16)}")
    k(f"""
    s_sub_u32 s26, s26, 1
    s_cmp_lg_u32 s26, 0
    s_cbranch_scc1 {n}_slow2
    """)
    k.nop(12)
    k(f"""
    v_mov_b32 v12, v{OV+12}
    v_mov_b32 v13, v{OV+12}
    s_nop 1
    v_permlane32_swap_b32 v12, v13
    s_branch {n}_fin
    """)
    k.label(f"{n}_end")
    k("s_endpgm")
    return k

def build(path, aslist):
    kname = NAME + "_kernel"
    k = gen(kname)
    hdr = open("cdna_kernels/%s.s.ref" % NAME).read().split("; Override")[0]
    out = hdr
    if aslist: out += f"; @launch kernel={kname} grid=(256,1,1) block=(256,1,1) lds=163840\n"
    else: out += "; @launch grid=(256,1,1) block=(256,1,1) lds=163840\n"
    out += '.amdgcn_target "amdgcn-amd-amdhsa--gfx950"\n.text\n'
    errs = check_kernel(k)
    for e in errs: print("HAZARD", e)
    out += f".globl {k.name}\n.p2align 8\n.type {k.name},@function\n{k.name}:\n" + k.text() + "\n"
    out += f""".section .rodata,"a"
.p2align 6
.amdhsa_kernel {k.name}
  .amdhsa_next_free_vgpr 512
  .amdhsa_next_free_sgpr {102 if STAMP else 80}
  .amdhsa_accum_offset 256
  .amdhsa_group_segment_fixed_size 0
  .amdhsa_kernarg_size 72
  .amdhsa_user_sgpr_count 2
  .amdhsa_user_sgpr_kernarg_segment_ptr 1
  .amdhsa_system_sgpr_workgroup_id_x 1
.end_amdhsa_kernel
"""
    open(path, "w").write(out)
    if STAMP: open(path + ".names", "w").write("\n".join(SEL))
    print("wrote", path, len(out), "bytes; hazards:", len(errs))

if __name__ == "__main__":
    if len(sys.argv) > 1: build(sys.argv[1], True)
    else: build("cdna_kernels/%s.s" % NAME, False)
```
